```python
import torch

def _softmax(x, axis=-1):
    return torch.softmax(x, dim=axis)
def _gelu(x):
    return torch.nn.functional.gelu(x, approximate="tanh")
def _silu(x):
    return torch.nn.functional.silu(x)
def _sigmoid(x):
    return torch.sigmoid(x)
def _layernorm(x, axis=-1, eps=1e-5):
    m = x.mean(dim=axis, keepdim=True)
    v = x.var(dim=axis, keepdim=True, unbiased=False)
    return (x - m) / torch.sqrt(v + eps)
def _scatter_add(tgt, idx, src, axis=0):
    return tgt.clone().index_add_(axis, idx, src)
def _segment_sum(src, seg, n):
    out = torch.zeros((n,) + src.shape[1:], dtype=src.dtype)
    return out.index_add_(0, seg, src)
def _pad(x, pw):
    flat = tuple(v for pair in reversed(pw) for v in pair)
    return torch.nn.functional.pad(x, flat)

kernel_name = 'recurrent_scan__spectral_fnet__swiglu_ffn__prompt'

def setup_inputs():

    _w = (lambda a: (lambda t: t.to(torch.bfloat16) if t.is_floating_point() else t)(torch.as_tensor(a)))
    def _A_setup():
        B, S, D = 1, 2048, 512
        ns = torch.arange(S)[:, None] * torch.arange(S)[None, :]
        nd = torch.arange(D)[:, None] * torch.arange(D)[None, :]
        Ws_re = torch.cos(-2.0 * torch.pi * ns / S).to(float)
        Ws_im = torch.sin(-2.0 * torch.pi * ns / S).to(float)
        Wd_re = torch.cos(-2.0 * torch.pi * nd / D).to(float)
        Wd_im = torch.sin(-2.0 * torch.pi * nd / D).to(float)
        return {
            "x": _w((lambda *s: torch.randn(*s, dtype=torch.bfloat16) * 0.05)(B, S, D)),
            "dft_seq_re": _w(Ws_re),
            "dft_seq_im": _w(Ws_im),
            "dft_hid_re": _w(Wd_re),
            "dft_hid_im": _w(Wd_im),
        }
    _A_in = _A_setup()

    def _B_setup():
        B, S, D, F = 1, 2048, 512, 1792
        return {
            "x": _w((lambda *s: torch.randn(*s, dtype=torch.bfloat16) * 0.05)(B, S, D)),
            "w_gate": _w((lambda *s: torch.randn(*s, dtype=torch.bfloat16) * 0.05)(D, F)),
            "w_up": _w((lambda *s: torch.randn(*s, dtype=torch.bfloat16) * 0.05)(D, F)),
            "w_down": _w((lambda *s: torch.randn(*s, dtype=torch.bfloat16) * 0.05)(F, D)),
        }
    _B_in = _B_setup()

    return {
        "A_x": _A_in["x"],
        "A_dft_seq_re": _A_in["dft_seq_re"],
        "A_dft_seq_im": _A_in["dft_seq_im"],
        "A_dft_hid_re": _A_in["dft_hid_re"],
        "A_dft_hid_im": _A_in["dft_hid_im"],
        "B_x": _B_in["x"],
        "B_w_gate": _B_in["w_gate"],
        "B_w_up": _B_in["w_up"],
        "B_w_down": _B_in["w_down"],
    }

def reference(A_x, A_dft_seq_re, A_dft_seq_im, A_dft_hid_re, A_dft_hid_im, B_x, B_w_gate, B_w_up, B_w_down):
    def _A_ref(x, dft_seq_re, dft_seq_im, dft_hid_re, dft_hid_im):
        a = torch.einsum("bsd,ed->bse", x, dft_hid_re)
        b = torch.einsum("bsd,ed->bse", x, dft_hid_im)
        y = torch.einsum("ts,bse->bte", dft_seq_re, a) - torch.einsum("ts,bse->bte", dft_seq_im, b)
        return y

    def _B_ref(x, w_gate, w_up, w_down):
        g = _silu(x @ w_gate)
        u = x @ w_up
        return (g * u) @ w_down

    x = A_x
    xn = _layernorm(x, axis=-1)
    s = _A_ref(xn, A_dft_seq_re, A_dft_seq_im, A_dft_hid_re, A_dft_hid_im)
    g = _silu(_B_ref(xn, B_w_gate, B_w_up, B_w_down))
    return x + s * g
```

```python
import hz
NAME = 'recurrent_scan__spectral_fnet__swiglu_ffn__prompt'
HDR = open('cdna_kernels/%s.s.ref' % NAME).read().split('; Override launch geometry')[0]

H_OFF = 0
Z_OFF = 0x700000
ZROW = 4224
ZT1 = 16 * ZROW
CS_OFF = 0x910000
ST_OFF = 0x950000
R_OFF = 0x958000
N_OFF = 0x95A000
WS_SIZE = 0x95B000
DBG_OFF = 0x1000000

class K:
    def __init__(self, name):
        self.name = name; self.L = []
    def __call__(self, s):
        for line in s.strip('\n').split('\n'):
            line = line.strip()
            if not line: continue
            self.L.append(line if line.endswith(':') else '    ' + line)
    def text(self, verbose=False):
        L, n = hz.process(self.L, insert=True, verbose=verbose)
        return ('.globl %s\n.p2align 8\n.type %s,@function\n%s:\n' % (self.name, self.name, self.name)) + '\n'.join(L) + '\n'
    def desc(self, vgpr, accum, sgpr=100):
        return ('''.amdhsa_kernel %s
  .amdhsa_next_free_vgpr %d
  .amdhsa_next_free_sgpr %d
  .amdhsa_accum_offset %d
  .amdhsa_group_segment_fixed_size 0
  .amdhsa_kernarg_size 96
  .amdhsa_user_sgpr_count 2
  .amdhsa_user_sgpr_kernarg_segment_ptr 1
  .amdhsa_system_sgpr_workgroup_id_x 1
.end_amdhsa_kernel
''' % (self.name, vgpr, sgpr, accum))

def vr(b, n=1, p='v'):
    return '%s%d' % (p, b) if n == 1 else '%s[%d:%d]' % (p, b, b+n-1)
def ar(b, n=1): return vr(b, n, 'a')
def sr(b, n=1): return vr(b, n, 's')
import struct
def f2u(x): return '0x%08x' % struct.unpack('<I', struct.pack('<f', x))[0]

def assemble(launches, kernels):
    out = HDR
    if len(launches) == 1:
        n, g, b, l = launches[0]
        out += '; @launch grid=(%d,1,1) block=(%d,1,1) lds=%d\n' % (g, b, l)
    else:
        for n, g, b, l in launches:
            out += '; @launch kernel=%s grid=(%d,1,1) block=(%d,1,1) lds=%d\n' % (n, g, b, l)
    out += '.amdgcn_target "amdgcn-amd-amdhsa--gfx950"\n.text\n'
    for k, v, a in kernels: out += k.text()
    out += '.section .rodata,"a"\n'
    for k, v, a in kernels: out += '.p2align 6\n' + k.desc(v, a)
    return out
```

```python
import re

TRANS = ('v_exp_f32', 'v_log_f32', 'v_rcp_f32', 'v_rsq_f32', 'v_sqrt_f32', 'v_sin_f32', 'v_cos_f32')

def regs_of(tok):
    tok = tok.strip()
    tok = re.sub(r'^-', '', tok)
    m = re.match(r'^abs\((.*)\)$', tok)
    if m: tok = m.group(1)
    m = re.match(r'^\|(.*)\|$', tok)
    if m: tok = m.group(1)
    m = re.match(r'^([vas])\[(\d+):(\d+)\]$', tok)
    if m: return [(m.group(1), i) for i in range(int(m.group(2)), int(m.group(3))+1)]
    m = re.match(r'^([vas])(\d+)$', tok)
    if m: return [(m.group(1), int(m.group(2)))]
    if tok == 'vcc': return [('s', 'vcc')]
    if tok in ('vcc_lo', 'vcc_hi'): return [('s', 'vcc')]
    if tok in ('exec', 'exec_lo', 'exec_hi'): return [('s', 'exec')]
    if tok == 'm0': return [('s', 'm0')]
    return []

class I:
    def __init__(self, text):
        self.text = text
        t = text.split(';')[0].strip()
        self.label = None; self.op = None
        self.dst = []; self.src = []; self.kind = None
        self.A = self.B = self.C = []
        if not t or t.startswith('.'):
            self.kind = 'dir'; return
        if t.endswith(':'):
            self.label = t[:-1]; self.kind = 'label'; return
        parts = t.split(None, 1)
        op = parts[0]; self.op = op
        rest = parts[1] if len(parts) > 1 else ''
        ops = [x.strip() for x in re.split(r',\s*(?![^\[]*\])', rest)] if rest else []
        mods = ''
        if ops:
            last = ops[-1].split(None, 1)
            ops[-1] = last[0]
            mods = last[1] if len(last) > 1 else ''
        self.mods = mods; self.ops = ops
        R = [regs_of(o) for o in ops]
        base = re.sub(r'_(e32|e64|dpp|sdwa)$', '', op)
        self.base = base
        if op.startswith('v_mfma'):
            self.kind = 'mfma'
            self.dst = R[0]; self.A = R[1]; self.B = R[2]; self.C = R[3]; self.src = R[1]+R[2]+R[3]
            if '32x32x16' in op or '32x32x8' in op: self.passes = 8
            elif '16x16x32' in op or '16x16x16' in op: self.passes = 4
            elif '4x4x4' in op: self.passes = 2
            else: raise ValueError(op)
        elif op.startswith('v_'):
            self.kind = 'valu'
            self.dpp = bool(re.search(r'row_|quad_perm|wave_', mods))
            self.opsel = ('op_sel' in mods and not op.startswith('v_pk_') and not op.startswith('v_dot')) or 'dst_sel' in mods
            self.trans = base in TRANS
            self.dot = base.startswith('v_dot')
            self.perml = base.startswith('v_permlane')
            self.rdl = base in ('v_readlane_b32', 'v_readfirstlane_b32')
            if base == 'v_nop': pass
            elif self.perml:
                self.dst = R[0]+R[1]; self.src = R[0]+R[1]
            elif base in ('v_add_co_u32', 'v_sub_co_u32', 'v_addc_co_u32', 'v_subb_co_u32'):
                self.dst = R[0]+R[1]; self.src = sum(R[2:], [])
            else:
                self.dst = R[0]; self.src = sum(R[1:], [])
                if base in ('v_fmac_f32', 'v_dot2c_f32_bf16', 'v_writelane_b32') or self.dpp or self.opsel:
                    self.src = self.src + R[0]
        elif op.startswith('ds_'):
            self.kind = 'ds'
            if 'read' in op or 'permute' in op or 'swizzle' in op:
                self.dst = R[0]; self.src = sum(R[1:], [])
            else:
                self.src = sum(R, [])
        elif op.startswith('buffer_') or op.startswith('global_'):
            self.kind = 'vmem'
            self.lds = bool(re.search(r'\blds\b', mods)) or '_lds_' in op
            self.wide_store = False
            if op in ('buffer_wbl2', 'buffer_inv'):
                pass
            elif 'load' in op and not self.lds:
                self.dst = R[0]; self.src = sum(R[1:], [])
            elif 'atomic' in op and re.search(r'\bsc0\b', mods):
                self.dst = R[0]; self.src = sum(R, [])
            else:
                self.src = sum(R, [])
                if 'store' in op and ('x4' in op or 'x3' in op):
                    self.wide_store = True
                    self.data = R[0] if op.startswith('buffer_') else R[1]
            if self.lds: self.src = self.src + [('s', 'm0')]
        elif op.startswith('s_'):
            if op.startswith('s_load') or op.startswith('s_memtime') or op.startswith('s_memrealtime') or op.startswith('s_buffer_load'):
                self.kind = 'smem'; self.dst = R[0]; self.src = sum(R[1:], [])
            else:
                self.kind = 'salu'
                if op.startswith('s_cmp') or op.startswith('s_cbranch') or op in ('s_branch', 's_nop', 's_waitcnt', 's_barrier', 's_endpgm', 's_setprio', 's_sleep', 's_bitcmp0_b32', 's_bitcmp1_b32'):
                    self.src = sum(R, [])
                else:
                    self.dst = R[0] if R else []; self.src = sum(R[1:], [])
                    if 'saveexec' in op: self.dst = self.dst + [('s', 'exec')]
        else:
            raise ValueError('unknown instr: ' + text)
    def states(self):
        if self.kind in ('dir', 'label'): return 0
        if self.op == 's_nop': return int(self.ops[0], 0) + 1
        return 1

def ov(a, b):
    return bool(set(a) & set(b))
def vec(l): return [r for r in l if r[0] in 'va']
def sca(l): return [r for r in l if r[0] == 's']

def need(p, c):
    n = 0
    if p.kind == 'valu':
        pv, ps = vec(p.dst), sca(p.dst)
        if c.kind == 'mfma' and ov(pv, c.src): n = max(n, 3 if p.dot else 2)
        if c.kind == 'valu':
            if p.trans and ov(pv, c.src): n = max(n, 1)
            if p.opsel and ov(pv, c.src + c.dst): n = max(n, 1)
            if c.rdl and ov(pv, c.src): n = max(n, 1)
            if (c.dpp or c.perml) and ov(pv, c.src): n = max(n, 2)
            if ov(ps, c.src): n = max(n, 4 if (c.rdl or c.base == 'v_writelane_b32') else 2)
            if p.dot and ov(pv, c.src + c.dst):
                if c.base == p.base:
                    ab = regs_of(c.ops[1]) + regs_of(c.ops[2])
                    if ov(pv, ab): n = max(n, 3)
                else: n = max(n, 3)
        if c.kind in ('vmem', 'ds') and p.dot and ov(pv, c.src): n = max(n, 3)
        if c.kind == 'vmem' and ov(ps, c.src): n = max(n, 5)
        if c.kind in ('salu', 'smem') and ov(ps, c.src): n = max(n, 1)
    if p.kind == 'mfma':
        P = p.passes
        big = {2: 5, 4: 8, 8: 12, 16: 20}[P]
        if c.kind == 'mfma':
            if ov(p.dst, c.A + c.B): n = max(n, big)
            if ov(p.dst, c.C):
                if c.C == p.dst and c.passes == P: n = max(n, 2 if P == 2 else 0)
                else: n = max(n, P + 2)
            elif ov(p.dst, c.dst): n = max(n, P + 2)
        elif c.kind in ('valu', 'vmem', 'ds'):
            if ov(p.dst, c.src + c.dst): n = max(n, big)
            if c.kind == 'valu' and ov(p.C, c.dst): n = max(n, P - 1)
    if p.kind == 'salu' and ('s', 'm0') in p.dst and c.kind == 'vmem' and c.lds: n = max(n, 1)
    if p.kind == 'vmem' and p.wide_store:
        if ov(p.data, c.dst): n = max(n, 2 if c.kind in ('valu', 'mfma') else 1)
    return n

def process(lines, insert=True, verbose=False):
    ins = [I(l) for l in lines]
    total = 0
    k0 = 0
    while True:
        lab = {x.label: k for k, x in enumerate(ins) if x.label}
        preds = [[] for _ in ins]
        for k, x in enumerate(ins):
            if x.op in ('s_branch',) or (x.op and x.op.startswith('s_cbranch')):
                preds[lab[x.ops[0]]].append(k)
            if k + 1 < len(ins) and x.op not in ('s_branch', 's_endpgm'):
                preds[k+1].append(k)
        fix = None
        for k, c in enumerate(ins):
            if k < k0 or c.kind in ('dir', 'label'): continue
            stack = [(q, 0) for q in preds[k]]
            seen = {}
            short = 0
            while stack:
                q, d = stack.pop()
                if d >= 20 or seen.get(q, 99) <= d: continue
                seen[q] = d
                p = ins[q]
                if p.kind not in ('dir', 'label'):
                    r = need(p, c)
                    if r > d and r - d > short:
                        short = r - d; why = p
                for q2 in preds[q]: stack.append((q2, d + p.states()))
            if short:
                if verbose or not insert: print(f'hazard: +{short} before "{c.text.strip()}" after "{why.text.strip()}"')
                if insert:
                    fix = (k, short); break
        if not fix: break
        k, short = fix
        new = []
        while short > 0:
            m = min(short, 16); new.append(I(f'    s_nop {m-1}')); short -= m
        ins[k:k] = new
        k0 = k
        total += 1
    return [x.text for x in ins], total
```

```python
import sys
from common import *

LOG2E = 1.4426950408889634
sX, sG, sU, sWS = 8, 12, 16, 20
sRB, sCT, sWV = 24, 25, 26
sSTR, sCOL = 27, 28
sT0, sT1, sT2, sT3 = 30, 31, 32, 33

def p1_setup(k):
    k(f'''
    s_cmp_ge_u32 s2, 256
    s_cbranch_scc1 {k.name}_end
    s_load_dwordx2 s[40:41], s[0:1], 0
    s_load_dwordx4 s[44:47], s[0:1], 24
    s_load_dwordx4 s[48:51], s[0:1], 48
    s_load_dwordx2 s[42:43], s[0:1], 88
    v_lshrrev_b32 v1, 6, v0
    v_and_b32 v0, 63, v0
    s_and_b32 s{sT0}, s2, 1
    s_lshl_b32 s{sT0}, s{sT0}, 3
    s_bfe_u32 s{sT1}, s2, 0x30003
    s_add_u32 s{sRB}, s{sT0}, s{sT1}
    s_bfe_u32 s{sT0}, s2, 0x20001
    s_lshl_b32 s{sT0}, s{sT0}, 2
    s_lshr_b32 s{sT1}, s2, 6
    s_add_u32 s{sCT}, s{sT0}, s{sT1}
    v_readfirstlane_b32 s{sWV}, v1
    s_mov_b32 s{sX+2}, {2097152+2048}
    s_mov_b32 s{sX+3}, 0x20000
    s_mov_b32 s{sG+3}, 0x20000
    s_mov_b32 s{sU+3}, 0x20000
    s_mov_b32 s{sWS+2}, {WS_SIZE}
    s_mov_b32 s{sWS+3}, 0x20000
    s_sub_u32 s{sT0}, s{sCT}, 14
    s_movk_i32 s{sSTR}, 1024
    s_cmp_lt_u32 s{sCT}, 14
    s_cselect_b32 s{sCOL}, s{sCT}, s{sT0}
    s_cselect_b32 s{sSTR}, 3584, s{sSTR}
    s_lshl_b32 s{sCOL}, s{sCOL}, 8
    s_lshl_b32 s{sG+2}, s{sSTR}, 9
    s_add_u32 s{sU+2}, s{sG+2}, 1024
    s_waitcnt lgkmcnt(0)
    s_cmp_lt_u32 s{sCT}, 14
    s_cselect_b32 s{sG}, s48, s44
    s_cselect_b32 s{sG+1}, s49, s45
    s_cselect_b32 s{sU}, s50, s46
    s_cselect_b32 s{sU+1}, s51, s47
    s_sub_u32 s{sU}, s{sU}, 1024
    s_subb_u32 s{sU+1}, s{sU+1}, 0
    s_sub_u32 s{sX}, s40, 2048
    s_subb_u32 s{sX+1}, s41, 0
    s_mov_b32 s{sWS}, s42
    s_mov_b32 s{sWS+1}, s43
    ''')

def lane_consts(k, vW, aW):
    k(f'''
    v_lshrrev_b32 v2, 4, v0
    v_and_b32 v3, 15, v0
    v_lshlrev_b32 v4, 2, v2
    v_xor_b32 v3, v3, v4
    v_lshlrev_b32 v3, 4, v3
    v_lshl_add_u32 v2, v1, 2, v2
    v_mul_lo_u32 v2, v2, s{sSTR}
    v_add_u32 v{vW}, v2, v3
    v_lshrrev_b32 v2, 5, v0
    v_mul_u32_u24 v2, 6144, v2
    v_bfe_u32 v3, v0, 2, 2
    v_lshl_add_u32 v2, v3, 8, v2
    v_xor_b32 v3, v3, v1
    v_lshl_add_u32 v2, v3, 6, v2
    v_bfe_u32 v3, v0, 4, 1
    v_lshl_add_u32 v2, v3, 5, v2
    v_and_b32 v3, 3, v0
    v_lshl_add_u32 v{aW}, v3, 3, v2
    ''')

def allreduce32(k, regs):
    for mod in ('quad_perm:[1,0,3,2]', 'quad_perm:[2,3,0,1]', 'row_half_mirror', 'row_mirror'):
        for r in regs:
            k(f'v_add_f32_dpp v{r}, v{r}, v{r} {mod} row_mask:0xf bank_mask:0xf')
    for r in regs:
        k(f'v_mov_b32 v{r+8}, v{r}')
    for r in regs:
        k(f'v_permlane16_swap_b32 v{r}, v{r+8}')
    for r in regs:
        k(f'v_add_f32 v{r}, v{r}, v{r+8}')

def gen_k0():
    k = K('k0_kernel')
    p1_setup(k)
    vW, aW = 10, 11
    lane_consts(k, vW, aW)
    k(f'''
    s_lshl_b32 s{sT0}, s{sRB}, 5
    s_mul_i32 s{sT0}, s{sT0}, s{sSTR}
    s_add_u32 s{sT0}, s{sT0}, s{sCOL}
    s_lshl_b32 s{sT1}, s{sSTR}, 4
    s_add_u32 s{sT1}, s{sT1}, s{sT0}
    s_mul_i32 s{sT2}, s{sWV}, 3072
    s_mov_b32 m0, s{sT2}
    buffer_load_dwordx4 v{vW}, s[{sG}:{sG+3}], s{sT0} offen lds
    buffer_load_dwordx4 v{vW}, s[{sU}:{sU+3}], s{sT0} offen offset:1024 lds
    s_add_u32 m0, s{sT2}, 12288
    buffer_load_dwordx4 v{vW}, s[{sG}:{sG+3}], s{sT1} offen lds
    buffer_load_dwordx4 v{vW}, s[{sU}:{sU+3}], s{sT1} offen offset:1024 lds
    ''')
    k(f'''
    s_and_b32 s{sT0}, s{sCT}, 3
    s_lshl_b32 s{sT0}, s{sT0}, 3
    s_lshl_b32 s{sT1}, s{sWV}, 1
    s_add_u32 s{sT0}, s{sT0}, s{sT1}
    v_lshrrev_b32 v2, 5, v0
    v_add_u32 v12, s{sT0}, v2
    v_and_b32 v3, 31, v0
    v_lshlrev_b32 v3, 4, v3
    v_lshl_add_u32 v3, v12, 16, v3
    s_lshr_b32 s{sT1}, s{sCT}, 2
    s_lshl_b32 s{sT2}, s{sT1}, 4
    s_add_u32 s{sT2}, s{sT2}, s{sRB}
    s_lshl_b32 s{sT2}, s{sT2}, 10
    buffer_load_dwordx4 v[16:19], v3, s[{sX}:{sX+3}], s{sT2} offen offset:2048
    buffer_load_dwordx4 v[20:23], v3, s[{sX}:{sX+3}], s{sT2} offen offset:2560
    s_lshl_b32 s{sT2}, s{sRB}, 2
    s_add_u32 s{sT2}, s{sT2}, s{sT1}
    s_lshl_b32 s{sT2}, s{sT2}, 5
    v_add_u32 v12, s{sT2}, v12
    s_mov_b32 s34, 0x3f803f80
    s_mov_b32 s35, 0xbf803f80
    s_mov_b32 s36, 0x00003f80
    s_mov_b32 s37, 0x3f800000
    v_mov_b32 v24, 0
    v_mov_b32 v25, 0
    v_mov_b32 v26, 0
    s_waitcnt vmcnt(0)
    s_barrier
    ''')
    for ks in range(2):
        for gu in range(2):
            for rd in range(2):
                b = 48 + ks*8 + gu*4 + rd*2
                k(f'ds_read_b64_tr_b16 v[{b}:{b+1}], v{aW} offset:{ks*12288 + rd*3072 + gu*1024}')
    for d in range(8):
        k(f'v_dot2_f32_bf16 v24, v{16+d}, s34, v24')
        k(f'v_dot2_f32_bf16 v25, v{16+d}, s35, v25')
    allreduce32(k, [24, 25])
    k(f'''
    v_mul_f32 v24, {f2u(-1.0/512)}, v24
    ''')
    for d in range(8):
        k(f'v_dot2_f32_bf16 v{36+d}, v{16+d}, s36, v24')
        k(f'v_dot2_f32_bf16 v{16+d}, v{16+d}, s37, v24')
    for d in range(8):
        k(f'v_fmac_f32 v26, v{36+d}, v{36+d}')
        k(f'v_fmac_f32 v26, v{16+d}, v{16+d}')
    allreduce32(k, [26])
    k(f'''
    v_mul_f32 v26, {f2u(1.0/512)}, v26
    v_cvt_pk_bf16_f32 v26, v26, v26
    v_and_b32 v26, 0xffff0000, v26
    v_add_f32 v26, {f2u(1e-5)}, v26
    v_cvt_pk_bf16_f32 v26, v26, v26
    v_and_b32 v26, 0xffff0000, v26
    v_sqrt_f32 v26, v26
    v_cvt_pk_bf16_f32 v28, v24, v24
    v_cvt_pk_bf16_f32 v26, v26, v26
    v_and_b32 v26, 0xffff0000, v26
    v_rcp_f32 v31, v26
    v_mul_f32 v29, v26, v26
    v_mul_f32 v30, {f2u(-LOG2E)}, v31
    v_mul_f32 v25, v25, v31
    v_cvt_pk_bf16_f32 v25, v25, v25
    v_mov_b32 v40, s34
    v_mov_b32 v41, s34
    v_mov_b32 v42, s34
    v_mov_b32 v43, s34
    s_waitcnt lgkmcnt(0)
    v_mfma_f32_32x32x16_bf16 v[64:79], v[40:43], v[48:51], 0
    v_mfma_f32_32x32x16_bf16 v[80:95], v[40:43], v[52:55], 0
    v_mfma_f32_32x32x16_bf16 v[64:79], v[40:43], v[56:59], v[64:79]
    v_mfma_f32_32x32x16_bf16 v[80:95], v[40:43], v[60:63], v[80:95]
    v_lshlrev_b32 v13, 4, v12
    v_lshlrev_b32 v14, 2, v12
    v_lshlrev_b32 v15, 1, v12
    s_mov_b32 s{sT0}, {ST_OFF}
    s_mov_b32 s{sT1}, {R_OFF}
    s_mov_b32 s{sT2}, {N_OFF}
    s_mov_b32 exec_lo, 1
    s_mov_b32 exec_hi, 1
    buffer_store_dwordx4 v[28:31], v13, s[{sWS}:{sWS+3}], s{sT0} offen
    buffer_store_dword v31, v14, s[{sWS}:{sWS+3}], s{sT1} offen
    buffer_store_short v25, v15, s[{sWS}:{sWS+3}], s{sT2} offen
    s_mov_b64 exec, -1
    v_cmp_gt_u32 vcc, 32, v0
    v_lshrrev_b32 v2, 5, v0
    v_and_b32 v3, 31, v0
    v_lshl_add_u32 v3, v2, 7, v3
    v_lshl_add_u32 v3, v1, 5, v3
    v_lshlrev_b32 v3, 2, v3
    s_lshl_b32 s{sT0}, s{sCT}, 4
    s_add_u32 s{sT0}, s{sT0}, s{sRB}
    s_lshl_b32 s{sT0}, s{sT0}, 10
    s_add_u32 s{sT0}, s{sT0}, {CS_OFF}
    v_cndmask_b32 v4, v80, v64, vcc
    buffer_store_dword v4, v3, s[{sWS}:{sWS+3}], s{sT0} offen
    {k.name}_end:
    s_endpgm
    ''')
    return k

ACC = 16
def acc(j, gu): return ACC + (j*2+gu)*16
FR = 144
def fx(buf, j): return FR + buf*24 + j*4
def fw(buf, gu): return FR + buf*24 + 16 + gu*4
SLOT = 12288; GRP = 4*SLOT; RING = 12*SLOT
MT = RING

def gen_k1():
    k = K('k1_kernel')
    p1_setup(k)
    vW, aW0, vX, aX0, aW, aX, aXt = 10, 11, 12, 13, 14, 15, 9
    sM, sWo, sXo, sGc, sCnt, sStr16, sMb = 34, 35, 36, 37, 38, 39, 52
    lane_consts(k, vW, aW0)
    k(f'''
    v_lshrrev_b32 v2, 3, v0
    v_lshl_add_u32 v2, v1, 3, v2
    v_bfe_u32 v3, v2, 1, 3
    v_and_b32 v4, 7, v0
    v_xor_b32 v3, v3, v4
    v_lshlrev_b32 v3, 4, v3
    v_lshl_add_u32 v{vX}, v2, 16, v3
    v_bfe_u32 v2, v0, 3, 2
    v_mul_u32_u24 v2, 3072, v2
    v_add_u32 v2, 2048, v2
    v_lshl_add_u32 v2, v4, 7, v2
    v_bfe_u32 v3, v0, 1, 3
    v_lshrrev_b32 v4, 5, v0
    v_xor_b32 v3, v3, v4
    v_lshl_add_u32 v{aX0}, v3, 4, v2
    s_mul_i32 s{sMb}, s{sWV}, 3072
    s_lshl_b32 s{sStr16}, s{sSTR}, 4
    s_lshl_b32 s{sXo}, s{sRB}, 10
    s_mov_b32 s{sWo}, s{sCOL}
    ''')
    for j in range(4):
        k(f'''
        s_add_u32 m0, s{sMb}, {(8+j)*SLOT}
        buffer_load_dwordx4 v{vX}, s[{sX}:{sX+3}], s{sXo} offen offset:2048 lds
        s_add_u32 s{sXo}, s{sXo}, {16384 if j < 3 else (-49152+128) & 0xffffffff}
        ''')
    for s in range(5):
        k(f'''
        s_add_u32 m0, s{sMb}, {s*SLOT}
        buffer_load_dwordx4 v{vW}, s[{sG}:{sG+3}], s{sWo} offen lds
        buffer_load_dwordx4 v{vW}, s[{sU}:{sU+3}], s{sWo} offen offset:1024 lds
        buffer_load_dwordx4 v{vX}, s[{sX}:{sX+3}], s{sXo} offen offset:2048 lds
        s_add_u32 s{sXo}, s{sXo}, {16384 if s%4 < 3 else (-49152+128) & 0xffffffff}
        s_add_u32 s{sWo}, s{sWo}, s{sStr16}
        ''')
    k(f's_add_u32 s{sM}, s{sMb}, {5*SLOT}')
    for r in range(128): k(f'v_mov_b32 v{ACC+r}, 0')
    k(f'''
    s_mov_b32 s{sGc}, 0
    s_mov_b32 s{sCnt}, 0
    v_mov_b32 v{aW}, v{aW0}
    v_add_u32 v{aX}, {2*GRP}, v{aX0}
    s_cmp_lt_u32 s{sCT}, 14
    s_cbranch_scc1 k1_nomt
    ''')
    k(f'''
    v_and_b32 v2, 31, v0
    v_lshrrev_b32 v3, 5, v0
    v_lshlrev_b32 v3, 8, v3
    v_lshl_add_u32 v3, v1, 4, v3
    v_add_u32 v3, s{sRB}, v3
    v_mul_u32_u24 v3, v2, v3
    v_cvt_f32_u32 v3, v3
    v_cvt_f32_u32 v2, v2
    v_mul_f32 v3, {f2u(1.0/2048)}, v3
    v_mul_f32 v2, {f2u(1.0/32)}, v2
    v_lshlrev_b32 v4, 4, v0
    v_lshl_add_u32 v4, v1, 12, v4
    v_add_u32 v4, {MT}, v4
    ''')
    for ks in range(2):
        for jj in range(8):
            ii = 16*ks + 8*(jj >> 2) + (jj & 3)
            k(f'v_fmamk_f32 v{192+jj}, v2, {f2u(float(ii))}, v3')
        for jj in range(8):
            k(f'v_cos_f32 v{200+jj}, v{192+jj}')
            k(f'v_sin_f32 v{208+jj}, v{192+jj}')
        for d in range(4):
            k(f'v_cvt_pk_bf16_f32 v{216+d}, v{200+2*d}, v{201+2*d}')
            k(f'v_cvt_pk_bf16_f32 v{220+d}, v{208+2*d}, v{209+2*d}')
        k(f'ds_write_b128 v4, v[216:219] offset:{ks*2048}')
        k(f'ds_write_b128 v4, v[220:223] offset:{ks*2048+1024}')
        k('s_waitcnt lgkmcnt(0)')
    k('k1_nomt:')
    k('s_waitcnt vmcnt(12)\ns_barrier')
    def reads(buf, ks, ax):
        R = []
        for j in range(4):
            R.append(f'ds_read_b128 {vr(fx(buf,j),4)}, v{ax} offset:{j*SLOT}')
        W = []
        for gu in range(2):
            for rd in range(2):
                W.append(f'ds_read_b64_tr_b16 {vr(fw(buf,gu)+2*rd,2)}, v{aW} offset:{ks*SLOT + rd*3072 + gu*1024}')
        return [W[0], W[1], R[0], W[2], W[3], R[1], R[2], R[3]]
    for r in reads(0, 0, aX): k(r)
    k(f's_cmp_lt_u32 s{sCT}, 14\ns_cbranch_scc0 k1_loop_dft')
    def loop(name, dft):
        k(f'{name}:')
        for ks in range(4):
            buf = ks & 1
            k('s_waitcnt vmcnt(9) lgkmcnt(0)\ns_barrier')
            pre = []
            if ks < 3:
                pre.append(f'v_xor_b32 v{aXt}, {(ks+1) << 5}, v{aX}')
                R = reads(buf ^ 1, ks+1, aXt)
            else:
                pre.append(f'v_add_u32 v{aX}, s{sGc}, v{aX0}')
                pre.append(f's_add_u32 s{sGc}, s{sGc}, {GRP}')
                pre.append(f's_cmp_eq_u32 s{sGc}, {RING}')
                pre.append(f's_cselect_b32 s{sGc}, 0, s{sGc}')
                pre.append(f'v_add_u32 v{aW}, s{sGc}, v{aW0}')
                R = reads(buf ^ 1, 0, aX)
            M = []
            for j in range(4):
                for gu in range(2):
                    a = vr(acc(j, gu), 16)
                    A, B = vr(fw(buf, gu), 4), vr(fx(buf, j), 4)
                    if dft: A, B = B, A
                    M.append(f'v_mfma_f32_32x32x16_bf16 {a}, {A}, {B}, {a}')
            sp = (ks + 5) % 4
            dma = [[f's_mov_b32 m0, s{sM}', f's_add_u32 s{sM}, s{sM}, {SLOT}',
                    f'buffer_load_dwordx4 v{vW}, s[{sG}:{sG+3}], s{sWo} offen lds'],
                   [f'buffer_load_dwordx4 v{vW}, s[{sU}:{sU+3}], s{sWo} offen offset:1024 lds', f's_add_u32 s{sWo}, s{sWo}, s{sStr16}'],
                   [f'buffer_load_dwordx4 v{vX}, s[{sX}:{sX+3}], s{sXo} offen offset:2048 lds',
                    f's_add_u32 s{sXo}, s{sXo}, {16384 if sp < 3 else (-49152+128) & 0xffffffff}']]
            if sp == 3:
                dma[1] += [f's_cmp_ge_u32 s{sM}, {RING}', f's_cselect_b32 s{sM}, s{sMb}, s{sM}']
                dma[2] += [f's_cmp_ge_u32 s{sCnt}, 5', f's_cselect_b32 s{sXo}, 0x40000000, s{sXo}']
            gaps = [pre + R[0:1], R[1:3], R[3:5], R[5:7], R[7:8] + dma[0][:2], dma[0][2:], dma[1], dma[2]]
            if ks == 3:
                gaps = [pre, R[0:2], R[2:4], R[4:6], R[6:8] + dma[0][:2], dma[0][2:], dma[1], dma[2] + [f's_add_u32 s{sCnt}, s{sCnt}, 1', f's_cmp_lt_u32 s{sCnt}, 8']]
            for m, g in zip(M, gaps):
                k(m)
                for x in g: k(x)
        k(f's_cbranch_scc1 {name}')
    def gather():
        k(f'''
        v_and_b32 v2, 31, v0
        v_lshrrev_b32 v3, 5, v0
        v_lshlrev_b32 v4, 4, v2
        v_lshl_add_u32 v5, v3, 7, v2
        v_lshl_add_u32 v5, v1, 5, v5
        v_lshlrev_b32 v5, 2, v5
        s_lshl_b32 s{sT0}, s{sRB}, 11
        s_add_u32 s{sT0}, s{sT0}, {ST_OFF}
        s_lshl_b32 s{sT1}, s{sCT}, 14
        s_add_u32 s{sT1}, s{sT1}, {CS_OFF}
        ''')
        for j in range(4):
            k(f'buffer_load_dwordx4 v[{192+4*j}:{195+4*j}], v4, s[{sWS}:{sWS+3}], s{sT0} offen offset:{512*j}')
        for q in range(16):
            if q and q % 4 == 0: k(f's_add_u32 s{sT1}, s{sT1}, 4096')
            k(f'buffer_load_dword v{208+q}, v5, s[{sWS}:{sWS+3}], s{sT1} offen offset:{1024*(q%4)}')
        k('v_cmp_gt_u32 vcc, 32, v0')
        k('s_waitcnt vmcnt(0) lgkmcnt(0)')
        for st in (8, 4, 2, 1):
            for q in range(st): k(f'v_add_f32 v{208+q}, v{208+q}, v{208+q+st}')
        k(f'''
        v_cvt_pk_bf16_f32 v209, v208, v208
        v_and_b32 v209, 0xffff0000, v209
        v_sub_f32 v208, v208, v209
        v_cvt_pk_bf16_f32 v210, v208, v208
        v_and_b32 v210, 0xffff0000, v210
        v_sub_f32 v208, v208, v210
        v_cvt_pk_bf16_f32 v6, v209, v210
        v_cvt_pk_bf16_f32 v7, v208, 0
        ''')
        for j in range(4):
            k(f'''
            v_cndmask_b32 v{208+4*j}, 0, v{192+4*j}, vcc
            v_cndmask_b32 v{209+4*j}, 0, v{192+4*j}, vcc
            v_cndmask_b32 v{210+4*j}, v{192+4*j}, 0, vcc
            v_cndmask_b32 v{211+4*j}, v{192+4*j}, 0, vcc
            ''')
    def corr(dft):
        for j in range(4):
            for gu in range(2):
                a = vr(acc(j, gu), 16)
                A, B = 'v[6:7]', vr(208+4*j+2*gu, 2)
                if dft: A, B = B, A
                k(f'v_mfma_f32_32x32x8_bf16 {a}, {A}, {B}, {a}')
    loop('k1_loop_ffn', False)
    gather(); corr(False)
    k(f'''
    v_lshlrev_b32 v5, 4, v0
    s_mul_i32 s{sT0}, s{sRB}, {4*112*1024}
    s_lshl_b32 s{sT1}, s{sCT}, 13
    s_add_u32 s{sT0}, s{sT0}, s{sT1}
    s_lshl_b32 s{sT1}, s{sWV}, 11
    s_add_u32 s{sT0}, s{sT0}, s{sT1}
    ''')
    for j in range(4):
        g, u = acc(j, 0), acc(j, 1)
        kk, c1 = 193+4*j, 194+4*j
        T = 224
        for v in range(16): k(f'v_mul_f32 v{T+v}, v{c1}, v{g+v}')
        for v in range(16): k(f'v_exp_f32 v{T+v}, v{T+v}')
        for v in range(16): k(f'v_mul_f32 v{g+v}, v{g+v}, v{u+v}')
        for v in range(16): k(f'v_fma_f32 v{T+v}, v{T+v}, v{kk}, v{kk}')
        for v in range(16): k(f'v_rcp_f32 v{T+v}, v{T+v}')
        for v in range(16): k(f'v_mul_f32 v{g+v}, v{g+v}, v{T+v}')
        for d in range(8): k(f'v_cvt_pk_bf16_f32 v{u+d}, v{g+2*d}, v{g+2*d+1}')
        k(f'buffer_store_dwordx4 {vr(u,4)}, v5, s[{sWS}:{sWS+3}], s{sT0} offen')
        k(f'buffer_store_dwordx4 {vr(u+4,4)}, v5, s[{sWS}:{sWS+3}], s{sT0} offen offset:1024')
        k(f's_add_u32 s{sT0}, s{sT0}, {112*1024}')
    k('s_endpgm')
    loop('k1_loop_dft', True)
    gather(); corr(True)
    k(f'''
    v_lshlrev_b32 v4, 4, v3
    v_lshlrev_b32 v5, 3, v3
    s_lshl_b32 s{sT0}, s{sRB}, 9
    s_add_u32 s{sT0}, s{sT0}, {R_OFF}
    s_lshl_b32 s{sT1}, s{sRB}, 8
    s_lshl_b32 s{sT2}, s{sWV}, 6
    s_add_u32 s{sT1}, s{sT1}, s{sT2}
    s_add_u32 s{sT1}, s{sT1}, {N_OFF}
    s_mov_b32 s53, 0x80008000
    v_lshlrev_b32 v8, 4, v0
    v_add_u32 v8, {MT}, v8
    ''')
    for j in range(4):
        for g4 in range(4):
            k(f'buffer_load_dwordx4 {vr(192+16*j+4*g4,4)}, v4, s[{sWS}:{sWS+3}], s{sT0} offen offset:{128*j+32*g4}')
    for q in range(4):
        k(f'buffer_load_dwordx2 {vr(184+2*q,2)}, v5, s[{sWS}:{sWS+3}], s{sT1} offen offset:{16*q}')
    k('s_waitcnt vmcnt(0)')
    for j in range(4):
        a, b = acc(j, 0), acc(j, 1)
        for q in range(4): k(f'ds_read_b128 {vr(144+4*q,4)}, v8 offset:{j*4096+q*1024}')
        for v in range(16): k(f'v_mul_f32 v{a+v}, v{a+v}, v{192+16*j+v}')
        for v in range(16): k(f'v_mul_f32 v{b+v}, v{b+v}, v{192+16*j+v}')
        for d in range(8): k(f'v_cvt_pk_bf16_f32 v{168+d}, v{a+2*d}, v{a+2*d+1}')
        for d in range(8): k(f'v_cvt_pk_bf16_f32 v{176+d}, v{b+2*d}, v{b+2*d+1}')
        k('s_waitcnt lgkmcnt(0)')
        for d in range(4):
            k(f'v_xor_b32 v{160+d}, s53, v{148+d}')
            k(f'v_xor_b32 v{164+d}, s53, v{156+d}')
        A, B = vr(a, 16), vr(b, 16)
        k(f'''
        v_mfma_f32_32x32x16_bf16 {A}, v[144:147], v[168:171], 0
        v_mfma_f32_32x32x16_bf16 {B}, v[144:147], v[176:179], 0
        v_mfma_f32_32x32x16_bf16 {A}, v[152:155], v[172:175], {A}
        v_mfma_f32_32x32x16_bf16 {B}, v[152:155], v[180:183], {B}
        v_mfma_f32_32x32x16_bf16 {A}, v[148:151], v[176:179], {A}
        v_mfma_f32_32x32x16_bf16 {B}, v[160:163], v[168:171], {B}
        v_mfma_f32_32x32x16_bf16 {A}, v[156:159], v[180:183], {A}
        v_mfma_f32_32x32x16_bf16 {B}, v[164:167], v[172:175], {B}
        s_nop 7
        ''')
    k(f'''
    s_sub_u32 s{sT2}, s{sCT}, 14
    s_lshl_b32 s{sT0}, s{sWV}, 12
    s_lshl_b32 s{sT1}, s{sT2}, 10
    s_add_u32 s{sT0}, s{sT0}, s{sT1}
    v_add_u32 v8, s{sT0}, v8
    ds_read_b128 v[144:147], v8
    ds_read_b128 v[148:151], v8 offset:2048
    s_cmp_eq_u32 s{sT2}, 0
    s_cselect_b32 s54, 1.0, -1.0
    s_mul_i32 s{sT0}, s{sRB}, {ZROW}
    s_add_u32 s{sT0}, s{sT0}, {Z_OFF}
    s_lshl_b32 s{sT1}, s{sWV}, 2
    s_lshl_b32 s{sT3}, s{sT2}, 1
    s_add_u32 s{sT1}, s{sT1}, s{sT3}
    s_add_u32 s{sT1}, s{sT1}, s{sT0}
    s_add_u32 s{sT1}, s{sT1}, 4096
    s_mov_b32 s55, {ZT1}
    v_mul_lo_u32 v4, v2, s55
    s_waitcnt lgkmcnt(0)
    v_mfma_f32_32x32x16_bf16 v[192:207], v[184:187], v[144:147], 0
    v_mfma_f32_32x32x16_bf16 v[192:207], v[188:191], v[148:151], v[192:207]
    s_lshl_b32 s55, s55, 2
    v_mul_lo_u32 v5, v3, s55
    v_lshl_add_u32 v2, v1, 5, v2
    v_lshl_add_u32 v5, v2, 4, v5
    s_lshl_b32 s{sT2}, s{sT2}, 11
    s_add_u32 s{sT0}, s{sT0}, s{sT2}
    v_mul_f32 v192, s54, v192
    v_cvt_pk_bf16_f32 v192, v192, v192
    s_mov_b32 exec_hi, 0
    buffer_store_short v192, v4, s[{sWS}:{sWS+3}], s{sT1} offen
    s_mov_b32 exec_hi, -1
    ''')
    for v in range(16):
        T = 208 + 4*(v % 4)
        for j in range(4): k(f'v_cvt_pk_bf16_f32 v{T+j}, v{acc(j,0)+v}, v{acc(j,1)+v}')
        k(f'buffer_store_dwordx4 {vr(T,4)}, v5, s[{sWS}:{sWS+3}], s{sT0} offen')
        k(f's_add_u32 s{sT0}, s{sT0}, {ZT1 if v % 4 < 3 else 5*ZT1}')
    k(f'{k.name}_end:\ns_endpgm')
    return k

def gen_k2():
    k = K('k2_kernel')
    sD, sO = 12, 16
    sTT, sC = 24, 25
    sDo, sH0, sH1, sMb, sCnt = 34, 35, 36, 37, 38
    vD, vH, aD0, aD1 = 10, 11, 12, 13
    AC = 16; Y = 80; BM = 96; HB = 128; WF = 160; ZF = 176; XR = 208
    k(f'''
    s_cmp_ge_u32 s2, 256
    s_cbranch_scc1 {k.name}_end
    s_load_dwordx2 s[40:41], s[0:1], 0
    s_load_dwordx4 s[44:47], s[0:1], 64
    s_load_dwordx2 s[42:43], s[0:1], 88
    v_lshrrev_b32 v1, 6, v0
    v_and_b32 v0, 63, v0
    s_and_b32 s{sT0}, s2, 7
    s_lshl_b32 s{sT0}, s{sT0}, 2
    s_lshr_b32 s{sT1}, s2, 6
    s_add_u32 s{sTT}, s{sT0}, s{sT1}
    s_bfe_u32 s{sC}, s2, 0x30003
    v_readfirstlane_b32 s{sWV}, v1
    s_mov_b32 s{sX+2}, 2097152
    s_mov_b32 s{sX+3}, 0x20000
    s_mov_b32 s{sD+2}, {1792*1024}
    s_mov_b32 s{sD+3}, 0x20000
    s_mov_b32 s{sO+2}, 2097152
    s_mov_b32 s{sO+3}, 0x20000
    s_mov_b32 s{sWS+2}, {WS_SIZE}
    s_mov_b32 s{sWS+3}, 0x20000
    v_lshrrev_b32 v2, 3, v0
    v_bfe_u32 v3, v0, 4, 1
    v_lshlrev_b32 v3, 2, v3
    v_and_b32 v4, 7, v0
    v_xor_b32 v3, v3, v4
    v_lshlrev_b32 v3, 4, v3
    v_lshl_add_u32 v{vD}, v2, 10, v3
    v_lshlrev_b32 v{vH}, 4, v0
    v_lshrrev_b32 v2, 5, v0
    v_bfe_u32 v3, v0, 2, 2
    v_lshl_add_u32 v2, v2, 2, v3
    v_lshlrev_b32 v2, 7, v2
    v_lshl_add_u32 v2, v1, 13, v2
    v_lshrrev_b32 v3, 1, v3
    v_lshrrev_b32 v4, 1, v1
    v_xor_b32 v3, v3, v4
    v_lshl_add_u32 v2, v3, 6, v2
    v_bfe_u32 v3, v0, 4, 1
    v_lshl_add_u32 v2, v3, 5, v2
    v_and_b32 v3, 1, v0
    v_lshl_add_u32 v2, v3, 4, v2
    v_bfe_u32 v3, v0, 1, 1
    v_lshl_add_u32 v{aD0}, v3, 3, v2
    v_xor_b32 v{aD1}, 64, v{aD0}
    s_mul_i32 s{sDo}, s{sWV}, {28*16*1024}
    s_lshl_b32 s{sT0}, s{sC}, 7
    s_add_u32 s{sDo}, s{sDo}, s{sT0}
    s_and_b32 s{sT0}, s{sTT}, 15
    s_lshl_b32 s{sT0}, s{sT0}, 2
    s_lshr_b32 s{sT1}, s{sTT}, 4
    s_add_u32 s{sT0}, s{sT0}, s{sT1}
    s_and_b32 s{sT1}, s{sWV}, 1
    s_lshl_b32 s{sT1}, s{sT1}, 1
    s_xor_b32 s{sT2}, s{sT1}, 2
    s_add_u32 s{sT1}, s{sT1}, s{sT0}
    s_add_u32 s{sT2}, s{sT2}, s{sT0}
    s_mul_i32 s{sT3}, s{sWV}, {28*1024}
    s_mul_i32 s{sH0}, s{sT1}, {112*1024}
    s_mul_i32 s{sH1}, s{sT2}, {112*1024}
    s_add_u32 s{sH0}, s{sH0}, s{sT3}
    s_add_u32 s{sH1}, s{sH1}, s{sT3}
    s_lshl_b32 s{sMb}, s{sWV}, 13
    s_waitcnt lgkmcnt(0)
    s_mov_b32 s{sX}, s40
    s_mov_b32 s{sX+1}, s41
    s_mov_b32 s{sD}, s44
    s_mov_b32 s{sD+1}, s45
    s_mov_b32 s{sO}, s46
    s_mov_b32 s{sO+1}, s47
    s_mov_b32 s{sWS}, s42
    s_mov_b32 s{sWS+1}, s43
    ''')
    def issue(q):
        return [f's_add_u32 m0, s{sMb}, {q*2048}',
                f's_add_u32 s{sT0}, s{sDo}, {8192-1024}',
                f'buffer_load_dwordx4 v{vD}, s[{sD}:{sD+3}], s{sDo} offen lds',
                f'buffer_load_dwordx4 v{vD}, s[{sD}:{sD+3}], s{sT0} offen offset:1024 lds',
                f's_add_u32 s{sDo}, s{sDo}, 16384',
                f'buffer_load_dwordx4 {vr(HB+8*q,4)}, v{vH}, s[{sWS}:{sWS+3}], s{sH0} offen offset:{q*1024}',
                f'buffer_load_dwordx4 {vr(HB+8*q+4,4)}, v{vH}, s[{sWS}:{sWS+3}], s{sH1} offen offset:{q*1024}']
    def trs(q):
        b = WF + 8*(q & 1)
        return [f'ds_read_b64_tr_b16 {vr(b+4*ch+2*rd,2)}, v{aD0+ch} offset:{q*2048+rd*1024}' for ch in range(2) for rd in range(2)]
    for q in range(4):
        for x in issue(q): k(x)
    k(f's_add_u32 s{sH0}, s{sH0}, 4096\ns_add_u32 s{sH1}, s{sH1}, 4096')
    for r in range(64): k(f'v_mov_b32 v{AC+r}, 0')
    k(f'''
    v_and_b32 v2, 31, v0
    v_and_b32 v3, 1, v1
    v_lshl_add_u32 v14, v2, 1, v3
    s_cmp_eq_u32 s{sTT}, 0
    s_cselect_b32 s{sT0}, 64, 63
    s_cmp_ge_u32 s{sC}, 4
    s_cselect_b32 s{sT0}, s{sT0}, 0
    s_cselect_b32 s{sT1}, -1, 1
    v_mul_lo_u32 v4, v14, s{sT1}
    v_add_u32 v4, s{sT0}, v4
    v_cvt_f32_u32 v4, v4
    v_mul_f32 v4, {f2u(1.0/64)}, v4
    v_lshrrev_b32 v5, 5, v0
    v_cvt_f32_u32 v6, v5
    v_mul_f32 v6, v6, v4
    ''')
    for ks in range(8):
        for j in range(4): k(f'v_fmamk_f32 v{ZF+j}, v4, {f2u(float(2*ks+16*j))}, v6')
        for j in range(4):
            k(f'v_cos_f32 v{ZF+4+j}, v{ZF+j}')
            k(f'v_sin_f32 v{ZF+8+j}, v{ZF+j}')
        for j in range(4): k(f'v_cvt_pk_bf16_f32 v{BM+4*ks+j}, v{ZF+4+j}, v{ZF+8+j}')
    k(f's_mov_b32 s{sCnt}, 0')
    k('s_waitcnt vmcnt(12)')
    for x in trs(0): k(x)
    k('k2_loop:')
    for q in range(4):
        k('s_waitcnt vmcnt(8) lgkmcnt(0)')
        T = trs((q+1) % 4)
        b = WF + 8*(q & 1)
        M = [f'v_mfma_f32_32x32x16_bf16 {vr(AC+16*(jh+2*ch),16)}, {vr(b+4*ch,4)}, {vr(HB+8*q+4*jh,4)}, {vr(AC+16*(jh+2*ch),16)}' for ch in range(2) for jh in range(2)]
        I_ = issue(q)
        k(M[0]); k(T[0]); k(T[1]); k(M[1]); k(T[2]); k(T[3]); k(M[2])
        for x in I_[:5]: k(x)
        k(M[3])
        for x in I_[5:]: k(x)
    k(f'''
    s_add_u32 s{sH0}, s{sH0}, 4096
    s_add_u32 s{sH1}, s{sH1}, 4096
    s_add_u32 s{sCnt}, s{sCnt}, 1
    s_cmp_ge_u32 s{sCnt}, 6
    s_cselect_b32 s{sDo}, 0x40000000, s{sDo}
    s_cselect_b32 s{sH0}, 0x40000000, s{sH0}
    s_cselect_b32 s{sH1}, 0x40000000, s{sH1}
    s_cmp_lt_u32 s{sCnt}, 7
    s_cbranch_scc1 k2_loop
    ''')
    k(f'''
    v_and_b32 v3, 19, v0
    v_bfe_u32 v4, v0, 2, 1
    v_lshl_add_u32 v3, v4, 3, v3
    v_bfe_u32 v4, v0, 3, 1
    v_lshl_add_u32 v3, v4, 2, v3
    s_lshr_b32 s{sT2}, s{sWV}, 1
    s_lshl_b32 s{sT2}, s{sT2}, 5
    s_lshl_b32 s{sT3}, s{sC}, 6
    s_add_u32 s{sT2}, s{sT2}, s{sT3}
    v_add_u32 v3, s{sT2}, v3
    s_sub_u32 s{sT3}, 32, s{sTT}
    s_and_b32 s{sT3}, s{sT3}, 31
    s_cmp_ge_u32 s{sC}, 4
    s_cselect_b32 s{sT0}, 512, 0
    s_cselect_b32 s{sT1}, -1, 1
    s_cselect_b32 s{sT3}, s{sT3}, s{sTT}
    v_mul_lo_u32 v3, v3, s{sT1}
    v_add_u32 v3, s{sT0}, v3
    v_lshlrev_b32 v3, 4, v3
    v_mul_u32_u24 v4, {ZROW}, v5
    v_add_u32 v3, v3, v4
    s_mul_i32 s{sT3}, s{sT3}, {ZT1}
    s_add_u32 s{sT3}, s{sT3}, {Z_OFF}
    ''')
    for ks in range(8):
        k(f'buffer_load_dwordx4 {vr(ZF+4*ks,4)}, v3, s[{sWS}:{sWS+3}], s{sT3} offen')
        k(f's_add_u32 s{sT3}, s{sT3}, {2*ZROW}')
    k(f'''
    v_lshlrev_b32 v14, 15, v14
    v_lshl_add_u32 v14, v5, 4, v14
    s_lshl_b32 s{sT0}, s{sTT}, 10
    s_lshl_b32 s{sT2}, s{sT2}, 1
    s_add_u32 s{sT0}, s{sT0}, s{sT2}
    buffer_load_dwordx4 {vr(XR,4)}, v14, s[{sX}:{sX+3}], s{sT0} offen
    buffer_load_dwordx4 {vr(XR+4,4)}, v14, s[{sX}:{sX+3}], s{sT0} offen offset:32
    ''')
    for d in (1, 2, 3):
        k(f'''
        s_xor_b32 s{sT1}, s{sWV}, {d}
        s_mul_i32 s{sT1}, s{sT1}, 12288
        s_add_u32 s{sT1}, s{sT1}, {32768 + (d-1)*4096}
        v_add_u32 v4, s{sT1}, v{vH}
        ''')
        for q in range(4): k(f'ds_write_b128 v4, {vr(AC+16*d+4*q,4)} offset:{q*1024}')
    k(f'''
    s_mul_i32 s{sT1}, s{sWV}, 12288
    s_add_u32 s{sT1}, s{sT1}, 32768
    v_add_u32 v4, s{sT1}, v{vH}
    s_waitcnt lgkmcnt(0)
    s_barrier
    ''')
    for q in range(12): k(f'ds_read_b128 {vr(AC+16+4*q,4)}, v4 offset:{q*1024}')
    k('s_waitcnt vmcnt(2)')
    for ks in range(8):
        k(f'v_mfma_f32_32x32x16_bf16 {vr(Y,16)}, {vr(ZF+4*ks,4)}, {vr(BM+4*ks,4)}, {vr(Y,16) if ks else 0}')
    k('s_waitcnt lgkmcnt(0)')
    for v in range(16): k(f'v_add_f32 v{AC+v}, v{AC+v}, v{AC+16+v}')
    for v in range(16): k(f'v_add_f32 v{AC+32+v}, v{AC+32+v}, v{AC+48+v}')
    for v in range(16): k(f'v_add_f32 v{AC+v}, v{AC+v}, v{AC+32+v}')
    T = AC+16
    for v in range(16): k(f'v_mul_f32 v{T+v}, {f2u(-LOG2E)}, v{AC+v}')
    for v in range(16): k(f'v_exp_f32 v{T+v}, v{T+v}')
    for v in range(16): k(f'v_mul_f32 v{AC+v}, v{AC+v}, v{Y+v}')
    for v in range(16): k(f'v_add_f32 v{T+v}, 1.0, v{T+v}')
    for v in range(16): k(f'v_rcp_f32 v{T+v}, v{T+v}')
    k('s_waitcnt vmcnt(0)')
    for d in range(8):
        k(f'v_lshlrev_b32 v{T+16+2*d}, 16, v{XR+d}')
        k(f'v_and_b32 v{T+17+2*d}, 0xffff0000, v{XR+d}')
    for v in range(16): k(f'v_fmac_f32 v{T+16+v}, v{AC+v}, v{T+v}')
    for d in range(8): k(f'v_cvt_pk_bf16_f32 v{XR+d}, v{T+16+2*d}, v{T+17+2*d}')
    k(f'''
    buffer_store_dwordx4 {vr(XR,4)}, v14, s[{sO}:{sO+3}], s{sT0} offen
    buffer_store_dwordx4 {vr(XR+4,4)}, v14, s[{sO}:{sO+3}], s{sT0} offen offset:32
    {k.name}_end:
    s_endpgm
    ''')
    return k

if __name__ == '__main__':
    k0, k1, k2 = gen_k0(), gen_k1(), gen_k2()
    txt = assemble([('k0_kernel', 256, 256, 24576), ('k1_kernel', 256, 256, 163840), ('k2_kernel', 256, 256, 81920)],
                   [(k0, 96, 96), (k1, 256, 256), (k2, 256, 256)])
    open(sys.argv[1], 'w').write(txt)
```

```python
from v1 import *
def empty(name):
    k = K(name); k('s_endpgm'); return k
def chase(name, n, karg_off, stride):
    k = K(name)
    k(f'''
    s_cmp_ge_u32 s2, 1
    s_cbranch_scc1 {name}_end
    s_load_dwordx2 s[4:5], s[0:1], {karg_off}
    s_waitcnt lgkmcnt(0)
    s_mov_b32 s8, s4
    s_mov_b32 s9, s5
    s_mov_b32 s10, 1048576
    s_mov_b32 s11, 0x20000
    v_mov_b32 v1, 0
    s_mov_b32 s12, 0
    s_mov_b32 s13, 0
    {name}_loop:
    s_cmp_ge_u32 s12, {n}
    s_cbranch_scc1 {name}_end
    buffer_load_dword v2, v1, s[8:11], s13 offen
    s_add_u32 s13, s13, {stride}
    s_add_u32 s12, s12, 1
    s_waitcnt vmcnt(0)
    s_branch {name}_loop
    {name}_end:
    s_endpgm
    ''')
    return k
base_l = [('k0_kernel', 256, 256, 24576), ('k1_kernel', 256, 256, 163840), ('k2_kernel', 256, 256, 81920)]
def base_k(): return [(gen_k0(), 96, 96), (gen_k1(), 256, 256), (gen_k2(), 256, 256)]
open('pA.s', 'w').write(assemble(base_l, base_k()))
open('pB.s', 'w').write(assemble(base_l + [('e_kernel', 1, 64, 0)], base_k() + [(empty('e_kernel'), 8, 8)]))
open('pC.s', 'w').write(assemble(base_l + [('e_kernel', 1, 64, 0)]*4, base_k() + [(empty('e_kernel'), 8, 8)]))
open('pD.s', 'w').write(assemble([('c_kernel', 1, 64, 0)] + base_l, base_k() + [(chase('c_kernel', 0, 40, 4096), 8, 8)]))
open('pE.s', 'w').write(assemble([('c_kernel', 1, 64, 0)] + base_l, base_k() + [(chase('c_kernel', 100, 40, 4096), 8, 8)]))
open('pF.s', 'w').write(assemble([('c_kernel', 1, 64, 0)] + base_l, base_k() + [(chase('c_kernel', 100, 8, 4096), 8, 8)]))
```

```python
import hz
NAME = 'recurrent_scan__spectral_fnet__swiglu_ffn__prompt'
HDR = open('cdna_kernels/%s.s.ref' % NAME).read().split('; Override launch geometry')[0]

H_OFF = 0
Z_OFF = 0x700000
ZROW = 4224
ZT1 = 16 * ZROW
CS_OFF = 0x910000
ST_OFF = 0x950000
R_OFF = 0x958000
N_OFF = 0x95A000
WS_SIZE = 0x95B000
DBG_OFF = 0x1000000

class K:
    def __init__(self, name):
        self.name = name; self.L = []
    def __call__(self, s):
        for line in s.strip('\n').split('\n'):
            line = line.strip()
            if not line: continue
            self.L.append(line if line.endswith(':') else '    ' + line)
    def text(self, verbose=False):
        L, n = hz.process(self.L, insert=True, verbose=verbose)
        return ('.globl %s\n.p2align 8\n.type %s,@function\n%s:\n' % (self.name, self.name, self.name)) + '\n'.join(L) + '\n'
    def desc(self, vgpr, accum, sgpr=100):
        return ('''.amdhsa_kernel %s
  .amdhsa_next_free_vgpr %d
  .amdhsa_next_free_sgpr %d
  .amdhsa_accum_offset %d
  .amdhsa_group_segment_fixed_size 0
  .amdhsa_kernarg_size 96
  .amdhsa_user_sgpr_count 2
  .amdhsa_user_sgpr_kernarg_segment_ptr 1
  .amdhsa_system_sgpr_workgroup_id_x 1
.end_amdhsa_kernel
''' % (self.name, vgpr, sgpr, accum))

def vr(b, n=1, p='v'):
    return '%s%d' % (p, b) if n == 1 else '%s[%d:%d]' % (p, b, b+n-1)
def ar(b, n=1): return vr(b, n, 'a')
def sr(b, n=1): return vr(b, n, 's')
import struct
def f2u(x): return '0x%08x' % struct.unpack('<I', struct.pack('<f', x))[0]

def assemble(launches, kernels):
    out = HDR
    if len(launches) == 1:
        n, g, b, l = launches[0]
        out += '; @launch grid=(%d,1,1) block=(%d,1,1) lds=%d\n' % (g, b, l)
    else:
        for n, g, b, l in launches:
            out += '; @launch kernel=%s grid=(%d,1,1) block=(%d,1,1) lds=%d\n' % (n, g, b, l)
    out += '.amdgcn_target "amdgcn-amd-amdhsa--gfx950"\n.text\n'
    import os
    for k, v, a in kernels: out += k.text(bool(os.environ.get('HZV')))
    out += '.section .rodata,"a"\n'
    for k, v, a in kernels: out += '.p2align 6\n' + k.desc(v, a)
    return out

STAMPS = False
SBASE = 78
def stamp(k, idx, cyc=False):
    import common
    if common.STAMPS:
        b = 64 + 2*(idx % 16)
        k(f's_mem{"time" if cyc else "realtime"} s[{b}:{b+1}]')
def stamp_flush(k, idxs, sWV, wsptr=(42, 43), vt=(2, 3)):
    import common
    if not common.STAMPS: return
    k(f'''
    s_waitcnt lgkmcnt(0)
    s_add_u32 s56, s{wsptr[0]}, {DBG_OFF}
    s_addc_u32 s57, s{wsptr[1]}, 0
    s_mov_b32 s58, 0x100000
    s_mov_b32 s59, 0x20000
    s_lshl_b32 s60, s2, 2
    s_add_u32 s60, s60, s{sWV}
    s_lshl_b32 s60, s60, 8
    v_mov_b32 v{vt[0]}, 0
    ''')
    for i in idxs:
        k(f'v_mov_b32 v{vt[1]}, s{SBASE+2*(i%16)}')
        k(f'buffer_store_dword v{vt[1]}, v{vt[0]}, s[56:59], s60 offen offset:{4*i}')
```

```python
import re
TRANS = ('v_exp_f32', 'v_rcp_f32', 'v_rsq_f32', 'v_sqrt_f32', 'v_sin_f32', 'v_cos_f32')

class Op:
    def __init__(self, text, tag=None, counted=True, vm=None, ds=None, wide=False):
        self.text = text; self.tag = tag; self.counted = counted; self.vm = vm; self.ds = ds
        t = text.split()[0] if text else 's_waitcnt'
        self.wide = wide or 'x4' in t
        if text.endswith(':') and '\n' not in text: self.kind = 'label'
        elif t.startswith('v_mfma'): self.kind = 'mfma'
        elif t in TRANS: self.kind = 'trans'
        elif t.startswith('v_'): self.kind = 'valu'
        elif t.startswith('ds_'): self.kind = 'ds'
        elif t.startswith('buffer_') or t.startswith('global_'): self.kind = 'vmem'
        else: self.kind = 'salu'
def W(vm=None, ds=None): return Op('', vm=vm, ds=ds)
def op(x): return x if isinstance(x, Op) else Op(x)
def ops(s):
    return [Op(l.strip()) for l in s.strip('\n').split('\n') if l.strip()]

class Gaps:
    def __init__(self, mfmas):
        self.m = [op(x) for x in mfmas]
        self.pre = [[] for _ in mfmas]
        self.post = [[] for _ in mfmas]
        self.closed = [False]*len(mfmas)
        self.vslot = None
    def cost(self, g):
        k = [x.kind for x in self.pre[g] + self.post[g]]
        return k
    def fits(self, g, o):
        if self.closed[g]: return False
        k = self.cost(g)
        nds = k.count('ds'); nvm = k.count('vmem'); nv = k.count('valu') + 2*k.count('trans'); ns = k.count('salu')
        if nvm: return False
        if o.kind == 'vmem': return not k and (self.vslot is None or self.vslot(g) == o.wide)
        if o.kind == 'ds': return nds == 0 and nv + ns <= 1 and 'trans' not in k
        if nds:
            return o.kind != 'trans' and nv + ns == 0
        if o.kind == 'trans': return nv == 0 and ns <= 1
        if o.kind == 'valu': return nv <= 1 and nv + ns <= 2
        return nv + ns <= 2
    def put(self, g, o):
        if o.kind in ('ds', 'vmem'): self.pre[g].insert(0, o)
        elif o.kind == 'salu': self.pre[g].append(o)
        else: self.post[g].append(o)
    def force(self, g, lst, close=False):
        for o in lst: self.post[g].append(op(o))
        if close: self.closed[g] = True
    def chain(self, items, start, end=None, stride=1, ok=None, dry=False):
        g = start; prev = None
        for o in items:
            if isinstance(o, int): g += o; prev = None; continue
            o = op(o)
            if prev is not None:
                if prev.kind == 'valu' and o.kind == 'valu': pass
                elif prev.kind == 'salu' and o.kind in ('salu', 'valu', 'trans'): pass
                else: g += stride
            while g < len(self.m) and not (self.fits(g, o) and (ok is None or ok(g, o))): g += 1
            if g >= len(self.m) or (end is not None and g > end):
                raise RuntimeError(f'chain does not fit: {o.text} (start {start}, end {end})')
            if not dry: self.put(g, o)
            prev = o
        return g
    def linear(self):
        out = []
        for m, a, b in zip(self.m, self.pre, self.post):
            out.append(m); out += a; out += b
        return out

def resolve(stream):
    vm = []; ds = []; out = []
    for o in stream:
        if o.vm is not None or o.ds is not None:
            parts = []
            if o.vm is not None:
                if o.vm == 'all': n = 0
                else:
                    idx = -1
                    for t in o.vm:
                        where = [i for i, x in enumerate(vm) if x == t]
                        assert where, f'wait for unissued vmem tag {t}'
                        idx = max(idx, where[-1])
                    n = len(vm) - 1 - idx
                if n <= 63: parts.append(f'vmcnt({n})')
                else: parts.append('vmcnt(63)')
            if o.ds is not None:
                if o.ds == 'all': n = 0
                else:
                    idx = -1
                    for t in o.ds:
                        where = [i for i, x in enumerate(ds) if x == t]
                        assert where, f'wait for unissued ds tag {t}'
                        idx = max(idx, where[-1])
                    n = len(ds) - 1 - idx
                parts.append(f'lgkmcnt({min(n, 15)})')
            out.append('s_waitcnt ' + ' '.join(parts))
            continue
        if o.kind == 'vmem' and o.counted: vm.append(o.tag)
        if o.kind == 'ds': ds.append(o.tag)
        out.append(o.text)
    return out
```

```python
import sys
from common import *
import common
from sched import *

P = dict(rotc=7, rott=1, bar=1, pre0=10, pre1=16, pre2=4, cnt=[8,8,8,8,4,7,3,8,6,6,6,4], wdcnt=[0,0,0,0,4,0,0,0,0,2,2,4,7,7,7,7],
         wdpf=2, codepf=1, flagS=2, pollS=5, nb=12, fA=6, slp=4, p2map=0)
for a in sys.argv[2:]:
    if a == 's': common.STAMPS = True
    elif '=' in a:
        kk, vv = a.split('='); P[kk] = eval(vv)
LOG2E = 1.4426950408889634
ST_OFF = 0x950000; EF = 0x958000; ZF = 0x95C000; FLG = 0x960000; WS_SIZE = 0x980000
HRT = 56*1024
OOB = 0x7ffffff0
KN = NAME + '_kernel'
sX, sG, sU, sWS, sD, sO, sDB = 8, 12, 16, 20, 24, 28, 32
sRB, sCT, sWV, sSTR = 36, 37, 38, 39
sXc, sStr32, sMb, sWo, sXo, sDo, sFo = 41, 42, 43, 44, 45, 46, 47
sS0 = sRB
sK = 64
sT1, sC = 49, 50
T0, T1, T2, T3, T4 = 51, 52, 53, 54, 55
sGa, sGb = 61, 62
sSpin = 63
def srd(b): return f's[{b}:{b+3}]'
vW = [8, 9]; vX = [10, 11, 12, 13]; aW = [14, 15]; aX = [16, 17]; vD = [18, 19, 20, 21]; aD = [22, 23, 24, 25]
vL16, vOne, vCS, vE, vF, vG = 26, 27, 28, 29, 30, 31
def acc(jj, T): return 32 + (jj*4 + T)*4
def fx(b, jj): return 64 + 48*b + 4*jj
def fw(b, T): return 64 + 48*b + 32 + 4*T
MA = 160; BM = 224
SL = 16384
WDSLOT = [7, 8, 7, 6, 0, 1, 4, 2, 8, 3, 5, 7, 6, 9]
SLOTFREE = {0: 12, 1: 13, 2: 14, 3: 15, 4: 13, 5: 15, 6: 11, 7: 0, 8: 0, 9: 0}
def mf(d, a, b, c): return f'v_mfma_f32_16x16x32_bf16 {d}, {a}, {b}, {c}'

STS = P.get('st', [0,2,3,4,5,10,6,11,12,7,8,9])
assert len(STS) <= 12
def S_(idx, cyc=False, wait=False):
    if not common.STAMPS or idx not in STS: return []
    cyc = cyc or P.get('allcyc')
    b = 78 + 2*STS.index(idx)
    r = [Op(f's_mem{"time" if cyc else "realtime"} s[{b}:{b+1}]')]
    if wait: r.append(Op('s_waitcnt lgkmcnt(0)'))
    return r

slow = []
def spin_check(name, vreg, load, extra=[]):
    slow.extend(ops(f'''
    {name}_spin:
    s_add_u32 s{sSpin}, s{sSpin}, 1
    s_cmp_gt_u32 s{sSpin}, 0x40000
    s_cbranch_scc1 {name}_back
    s_sleep {P['slp']}
    {load}
    s_waitcnt vmcnt(0)
    ''') + [Op(x) for x in extra] + ops(f'''
    v_cmp_ne_u32 vcc, 1, v{vreg}
    s_cbranch_vccnz {name}_spin
    s_branch {name}_back
    '''))
    return [Op(f'v_cmp_ne_u32 vcc, 1, v{vreg}'), Op(f's_cbranch_vccnz {name}_spin\n{name}_back:')]

def dma_W(S):
    pre = [f's_add_u32 m0, s{sMb}, {(S%4)*SL}', f's_xor_b32 s{sWo}, s{sS0}, {S}', f's_mul_i32 s{sWo}, s{sWo}, s{sStr32}']
    out = []
    for n in range(4):
        k16, gu = n >> 1, n & 1
        out.append((pre if n == 0 else [], Op(f'buffer_load_dwordx4 v{vW[k16]}, {srd(sU if gu else sG)}, s{sWo} offen offset:{n*1024} lds', tag=f'W{S}'), pre[0]))
    return out
def dma_X(C):
    pre = [f's_add_u32 m0, s{sMb}, {(4 + C%3)*SL}', f's_xor_b32 s{sXo}, s{sXc}, {C << 7}']
    return [(pre if j == 0 else [], Op(f'buffer_load_dwordx4 v{vX[j]}, {srd(sX)}, s{sXo} offen offset:{j*1024} lds', tag=f'X{C}'), pre[0]) for j in range(4)]
def dma_D(k):
    pre = [f's_add_u32 m0, s{sMb}, {WDSLOT[k]*SL}', f's_lshl_b32 s{sDo}, s{sK+k}, 5']
    return [(pre if b == 0 else [], Op(f'buffer_load_dwordx4 v{vD[b]}, {srd(sD)}, s{sDo} offen offset:{b*1024} lds', tag=f'D{k}'), pre[0]) for b in range(4)]
class DmaSeq:
    def __init__(self): self.m0 = None
    def take(self, d):
        pre, o, m0 = d
        pre = list(pre)
        if m0 not in pre and self.m0 != m0: pre.append(m0)
        self.m0 = m0
        return [Op(x) for x in pre], o
def tr_D(k, regs, base_slot):
    return [Op(f'ds_read_b64_tr_b16 {ar(16*k + 4*ctl + 2*rd, 2)}, v{regs[ctl]} offset:{(WDSLOT[k]-base_slot)*SL + rd*2048}', tag=f'd{k}') for ctl in range(4) for rd in range(2)]
def frag_reads(S):
    b = S & 1; C = S >> 1
    X = [Op(f'ds_read_b128 {ar(fx(b,jj),4)}, v{aX[S&1]} offset:{(C%3)*SL + (jj&1)*8192 + (jj>>1)*1024}', tag='f') for jj in range(8)]
    Wr = [Op(f'ds_read_b64_tr_b16 {ar(fw(b,T)+2*rd,2)}, v{aW[T&1]} offset:{(S%4)*SL + rd*4096 + (T>>1)*1024}', tag='f') for T in range(4) for rd in range(2)]
    out = []
    for n in range(8): out += [Wr[n], X[n]]
    return out

p1list = dma_X(0) + dma_W(0) + dma_W(1) + dma_X(1) + dma_W(2) + dma_W(3)
for C in range(2, 8): p1list += dma_X(C) + dma_W(2*C) + dma_W(2*C+1)
def p1_earliest(tag):
    n = int(tag[1:])
    if tag[0] == 'W': return n - 4
    return 2*n - 5

def allreduce32(regs, tmp):
    o = []
    for mod in ('quad_perm:[1,0,3,2]', 'quad_perm:[2,3,0,1]', 'row_half_mirror', 'row_mirror'):
        for r in regs: o.append(f'v_add_f32_dpp v{r}, v{r}, v{r} {mod} row_mask:0xf bank_mask:0xf')
    for n, r in enumerate(regs): o.append(f'v_mov_b32 v{tmp+n}, v{r}')
    for n, r in enumerate(regs): o.append(f'v_permlane16_swap_b32 v{r}, v{tmp+n}')
    for n, r in enumerate(regs): o.append(f'v_add_f32 v{r}, v{r}, v{tmp+n}')
    return [Op(x) for x in o]

def prologue(seq):
    o = S_(0) + ops(f"""
    s_cmp_ge_u32 s2, 256
    s_cbranch_scc1 k_end
    s_load_dwordx2 s[{sX}:{sX+1}], s[0:1], 0
    s_load_dwordx4 s[40:43], s[0:1], 24
    s_load_dwordx4 s[44:47], s[0:1], 48
    s_load_dwordx2 s[{sWS}:{sWS+1}], s[0:1], 88
    s_load_dwordx2 s[{sD}:{sD+1}], s[0:1], 64
    s_load_dwordx2 s[{sO}:{sO+1}], s[0:1], 72
    s_load_dwordx2 s[{sDB}:{sDB+1}], s[0:1], 80
    v_lshrrev_b32 v1, 6, v0
    v_and_b32 v0, 63, v0
    """)
    if P['codepf']:
        o += ops(f"""
    s_getpc_b64 s[{T1}:{T1+1}]
    k_pc:
    s_lshr_b32 s{T0}, s2, 3
    s_mul_i32 s{T0}, s{T0}, 12
    v_mad_u32_u24 v2, v1, 3, v0
    v_add_lshl_u32 v2, s{T0}, v2, 7
    v_min_u32 v2, k_last-k_pc, v2
    v_mov_b32 v3, s{T1+1}
    v_add_co_u32 v2, vcc, s{T1}, v2
    v_readfirstlane_b32 s{sWV}, v1
    s_mov_b64 exec, 7
    v_addc_co_u32 v3, vcc, 0, v3, vcc
    """) + [Op('global_load_dword v250, v[2:3], off', tag='cp')] + ops('s_mov_b64 exec, -1')
    else:
        o += ops(f'v_readfirstlane_b32 s{sWV}, v1')
    tabs = []
    for par in range(2):
        t = 0
        for qd in range(4):
            for slot in range(4):
                if slot: ct = [0, 4, 7, 11][qd] + slot - 1
                else: ct = (3 if qd < 2 else 10) if par == (qd & 1) else 14 + (qd >> 1)
                t |= ct << (4*(qd*4 + slot))
        tabs.append(t)
    assert tabs[0] ^ tabs[1] == 0x00050005000d000d
    o += ops(f"""
    s_bfe_u32 s{T0}, s2, 0x30003
    s_and_b32 s{T1}, s2, 1
    s_lshl1_add_u32 s{sRB}, s{T0}, s{T1}
    s_bitcmp1_b32 s2, 2
    s_mov_b32 s{T2}, {tabs[0] & 0xffffffff}
    s_cselect_b32 s{T2}, {tabs[0] >> 32}, s{T2}
    s_cselect_b32 s{T3}, 5, 13
    s_and_b32 s{T0}, s{T0}, 1
    s_mul_i32 s{T3}, s{T3}, s{T0}
    s_and_b32 s{T0}, s2, 2
    s_lshl_b32 s{T0}, s{T0}, 3
    s_lshr_b32 s{T2}, s{T2}, s{T0}
    s_xor_b32 s{T2}, s{T2}, s{T3}
    s_lshr_b32 s{T0}, s2, 6
    s_lshl_b32 s{T0}, s{T0}, 2
    s_lshr_b32 s{T2}, s{T2}, s{T0}
    s_and_b32 s{sCT}, s{T2}, 15
    s_mov_b32 s{sX+2}, 2097152
    s_mov_b32 s{sX+3}, 0x20000
    v_lshrrev_b32 v2, 3, v0
    v_lshl_add_u32 v2, v1, 3, v2
    v_bfe_u32 v6, v2, 1, 3
    v_and_b32 v7, 7, v0
    v_xor_b32 v6, v6, v7
    v_lshlrev_b32 v6, 4, v6
    v_lshl_add_u32 v6, v2, 16, v6
    s_lshl_b32 s{T3}, s{sRB}, 10
    v_add_u32 v{vX[0]}, s{T3}, v6
    v_add_u32 v{vX[1]}, 15360, v{vX[0]}
    v_add_u32 v{vX[2]}, 30720, v{vX[0]}
    v_add_u32 v{vX[3]}, 46080, v{vX[0]}
    s_and_b32 s{T1}, s{sCT}, 3
    s_lshl_b32 s{T1}, s{T1}, 3
    v_lshrrev_b32 v2, 5, v0
    v_lshl_add_u32 v2, v1, 1, v2
    v_add_u32 v5, s{T1}, v2
    v_lshlrev_b32 v{vL16}, 4, v0
    v_and_b32 v3, 496, v{vL16}
    v_lshl_add_u32 v3, v5, 16, v3
    s_and_b32 s{T4}, s{sCT}, 12
    s_lshl_b32 s{T2}, s{T4}, 12
    s_add_u32 s{T2}, s{T2}, s{T3}
    s_and_b32 s{T0}, s{sCT}, 1
    s_movk_i32 s{sSTR}, 1024
    s_cmp_lt_u32 s{sCT}, 14
    s_cselect_b32 s{T0}, s{sCT}, s{T0}
    s_cselect_b32 s{sSTR}, 3584, s{sSTR}
    s_lshl_b32 s{T0}, s{T0}, 8
    v_lshrrev_b32 v2, 4, v0
    v_and_b32 v6, 2, v1
    v_lshl_or_b32 v6, v6, 1, v2
    v_lshlrev_b32 v6, 5, v6
    v_and_b32 v7, 240, v{vL16}
    v_xor_b32 v6, v6, v7
    v_add_u32 v6, s{T0}, v6
    v_lshl_add_u32 v2, v1, 2, v2
    v_mad_u32_u24 v{vW[0]}, v2, s{sSTR}, v6
    s_lshl_b32 s{T0}, s{sSTR}, 4
    s_sub_u32 s{T0}, s{T0}, 2048
    v_add_u32 v{vW[1]}, s{T0}, v{vW[0]}
    s_mov_b32 s{sG+3}, s{sX+3}
    s_mov_b32 s{sU+3}, s{sX+3}
    s_lshl_b32 s{sG+2}, s{sSTR}, 9
    s_add_u32 s{sU+2}, s{sG+2}, 1024
    s_cmp_lt_u32 s{sCT}, 14
    s_waitcnt lgkmcnt(0)
    """)
    o += S_('p0')
    o += [Op(f'buffer_load_dwordx4 v[160:163], v3, {srd(sX)}, s{T2} offen', tag='st'),
          Op(f'buffer_load_dwordx4 v[164:167], v3, {srd(sX)}, s{T2} offen offset:512', tag='st')]
    o += ops(f"""
    s_cselect_b64 s[{sG}:{sG+1}], s[44:45], s[40:41]
    s_cselect_b64 s[{sU}:{sU+1}], s[46:47], s[42:43]
    s_sub_u32 s{sU}, s{sU}, 1024
    s_subb_u32 s{sU+1}, s{sU+1}, 0
    s_lshr_b32 s{sXc}, s{sS0}, 1
    s_lshl_b32 s{sXc}, s{sXc}, 7
    s_lshl_b32 s{sStr32}, s{sSTR}, 5
    s_lshl_b32 s{sMb}, s{sWV}, 12
    """)
    nd = 0
    def dmas(n):
        nonlocal nd
        r = []
        for d in p1list[nd:nd+n]:
            pre, x = seq.take(d); r += pre + [x]
        nd += n
        return r
    o += dmas(6) + S_('p1')
    o += ops(f"""
    s_mov_b32 s{sWS+2}, {WS_SIZE}
    s_mov_b32 s{sWS+3}, s{sX+3}
    v_mov_b32 v168, 0
    v_mov_b32 v169, 0
    v_mov_b32 v170, 0
    v_mov_b32 v171, 0
    s_cmp_eq_u32 s2, 0
    s_cbranch_scc1 k_reset
    k_noreset:
    """)
    slow.extend(ops(f"""
    k_reset:
    s_add_u32 s{T0}, s{sMb}, {EF}
    buffer_store_dwordx4 v[168:171], v{vL16}, {srd(sWS)}, s{T0} offen sc1
    buffer_store_dwordx4 v[168:171], v{vL16}, {srd(sWS)}, s{T0} offen offset:1024 sc1
    buffer_store_dwordx4 v[168:171], v{vL16}, {srd(sWS)}, s{T0} offen offset:2048 sc1
    buffer_store_dwordx4 v[168:171], v{vL16}, {srd(sWS)}, s{T0} offen offset:3072 sc1
    s_nop 1
    s_branch k_noreset
    """))
    o += ops(f"""
    v_bfe_u32 v2, v0, 4, 1
    v_bfe_u32 v3, v0, 2, 2
    v_and_b32 v4, 3, v0
    v_lshrrev_b32 v6, 5, v0
    v_lshlrev_b32 v7, 3, v4
    v_lshl_add_u32 v7, v2, 13, v7
    v_lshl_add_u32 v7, v6, 11, v7
    v_lshl_add_u32 v7, v3, 8, v7
    v_lshl_or_b32 v4, v2, 2, v3
    v_lshlrev_b32 v6, 1, v1
    v_xor_b32 v6, v6, v4
    v_lshl_add_u32 v{aW[0]}, v6, 5, v7
    v_xor_b32 v{aW[1]}, 32, v{aW[0]}
    v_bfe_u32 v2, v0, 3, 1
    v_and_b32 v3, 7, v0
    v_lshlrev_b32 v2, 12, v2
    v_lshl_add_u32 v2, v3, 7, v2
    v_add_u32 v2, 65536, v2
    v_bfe_u32 v3, v0, 1, 3
    v_lshrrev_b32 v4, 4, v0
    v_xor_b32 v3, v3, v4
    v_lshl_add_u32 v2, v3, 4, v2
    s_and_b32 s{T0}, s{sS0}, 1
    s_lshl_b32 s{T0}, s{T0}, 6
    v_xor_b32 v{aX[0]}, s{T0}, v2
    v_xor_b32 v{aX[1]}, 64, v{aX[0]}
    v_mov_b32 v{vOne}, {OOB}
    v_writelane_b32 v{vOne}, 0, 0
    s_lshl_b32 s{T0}, s{sRB}, 7
    s_lshl3_add_u32 s{T0}, s{T4}, s{T0}
    v_add_lshl_u32 v5, s{T0}, v5, 4
    s_mov_b32 s{sDB+2}, 256
    s_mov_b32 s{sDB+3}, s{sX+3}
    s_mov_b32 s{sSpin}, 0
    s_cmp_ge_u32 s{sCT}, 14
    s_cbranch_scc1 k_mgen
    k_nomgen:
    s_mov_b32 s{T0}, 0x3f803f80
    s_mov_b32 s{T1}, 0xbf803f80
    s_mov_b32 s{T2}, 0x00003f80
    s_mov_b32 s{T3}, 0x3f800000
    v_mov_b32 v192, s{T0}
    v_mov_b32 v193, s{T0}
    v_mov_b32 v194, s{T0}
    v_mov_b32 v195, s{T0}
    v_mov_b32 v{vG}, 1
    """)
    slow.extend([Op('k_mgen:')] + mgen() + [Op('s_branch k_nomgen')])
    o += S_('p2')
    o += dmas(P['pre0'] - nd)
    o.append(W(vm=['st']))
    o += S_(1)
    for d in range(8):
        o += ops(f'v_dot2_f32_bf16 v168, v{160+d}, s{T0}, v168\nv_dot2_f32_bf16 v169, v{160+d}, s{T1}, v169')
    rest = P['pre1'] - nd
    o += dmas(rest//3)
    o += allreduce32([168, 169], 172)
    o += ops(f'v_mul_f32 v168, {f2u(-1.0/512)}, v168')
    for d in range(8):
        o += ops(f'v_dot2_f32_bf16 v{176+d}, v{160+d}, s{T2}, v168\nv_dot2_f32_bf16 v{160+d}, v{160+d}, s{T3}, v168')
    o += dmas(rest//3)
    for d in range(4):
        o += ops(f'v_pk_fma_f32 v[170:171], {vr(176+2*d,2)}, {vr(176+2*d,2)}, v[170:171]\nv_pk_fma_f32 v[170:171], {vr(160+2*d,2)}, {vr(160+2*d,2)}, v[170:171]')
    o += ops('v_add_f32 v170, v170, v171')
    o += allreduce32([170], 172)
    o += dmas(P['pre1'] - nd)
    o += ops(f"""
    v_mul_f32 v170, {f2u(1.0/512)}, v170
    v_cvt_pk_bf16_f32 v170, 0, v170
    v_add_f32 v170, {f2u(1e-5)}, v170
    v_cvt_pk_bf16_f32 v170, 0, v170
    v_sqrt_f32 v170, v170
    v_cvt_pk_bf16_f32 v172, 0, v168
    v_cvt_pk_bf16_f32 v170, 0, v170
    v_rcp_f32 v175, v170
    v_mul_f32 v173, v170, v170
    s_mov_b32 s{T0}, {ST_OFF}
    v_mul_f32 v174, {f2u(-LOG2E)}, v175
    v_mul_f32 v175, v169, v175
    s_mov_b32 exec_lo, 1
    s_mov_b32 exec_hi, 1
    """)
    o += [Op(f'buffer_store_dwordx4 v[172:175], v5, {srd(sWS)}, s{T0} offen sc1', tag='es'), Op('s_mov_b64 exec, -1')]
    o += S_('p3')
    o += [W(vm=['X0', 'W0']), Op('s_barrier')]
    o += S_(2)
    o += frag_reads(0)
    o += ops(f"""
    s_or_b32 s{T0}, s2, s{sWV}
    s_cbranch_scc0 k_ready
    k_noready:
    """)
    slow.extend(ops(f"""
    k_ready:
    buffer_store_dword v{vG}, v{vOne}, {srd(sDB)}, 0 offen sc1
    s_branch k_noready
    """))
    o += dmas(P['pre2'])
    return o, nd

def p2consts():
    if P['p2map'] == 0:
        o = ops(f"""
        s_and_b32 s{T0}, s2, 7
        s_lshr_b32 s{T1}, s2, 6
        s_lshl2_add_u32 s{sT1}, s{T0}, s{T1}
        s_bfe_u32 s{sC}, s2, 0x30003
        """)
    else:
        o = ops(f"""
        s_bfe_u32 s{T0}, s2, 0x20001
        s_bfe_u32 s{T1}, s2, 0x30003
        s_lshl3_add_u32 s{sT1}, s{T0}, s{T1}
        s_and_b32 s{T0}, s2, 1
        s_lshr_b32 s{T1}, s2, 6
        s_lshl2_add_u32 s{sC}, s{T0}, s{T1}
        """)
    o += ops(f"""
    s_and_b32 s{T0}, s{sC}, 1
    s_mul_i32 s{T0}, s{T0}, {P['rotc']*1024}
    s_and_b32 s{T1}, s{sT1}, 3
    s_mul_i32 s{T1}, s{T1}, {P['rott']*7}
    s_lshr_b32 s{T1}, s{T1}, 1
    s_lshl_b32 s{T1}, s{T1}, 10
    s_add_u32 s{T0}, s{T0}, s{T1}
    s_sub_u32 s{T1}, s{T0}, {14*1024}
    s_min_u32 s{sK}, s{T0}, s{T1}
    """)
    return o + ops(f'''
    s_mov_b32 s{sD+2}, {1792*1024}
    s_mov_b32 s{sD+3}, s{sX+3}
    s_mov_b32 s{sO+2}, 2097152
    s_mov_b32 s{sO+3}, s{sX+3}
    s_mul_i32 s{T1}, s{sWV}, {14*32768}
    s_lshl_b32 s{T0}, s{sC}, 7
    s_add_u32 s{T0}, s{T0}, s{T1}
    v_lshrrev_b32 v2, 3, v0
    v_lshrrev_b32 v3, 4, v0
    v_lshlrev_b32 v3, 1, v3
    v_and_b32 v4, 7, v0
    v_xor_b32 v3, v3, v4
    v_lshl_add_u32 v3, v3, 4, s{T0}
    v_lshl_add_u32 v{vD[0]}, v2, 10, v3
    v_add_u32 v{vD[1]}, 7168, v{vD[0]}
    v_add_u32 v{vD[2]}, 14336, v{vD[0]}
    v_add_u32 v{vD[3]}, 21504, v{vD[0]}
    v_bfe_u32 v2, v0, 2, 3
    v_lshrrev_b32 v3, 5, v0
    v_lshlrev_b32 v3, 10, v3
    v_lshl_add_u32 v3, v2, 7, v3
    v_lshl_add_u32 v3, v1, 12, v3
    v_and_b32 v4, 3, v0
    v_lshl_add_u32 v3, v4, 3, v3
    v_lshrrev_b32 v2, 1, v2
    v_and_b32 v4, 2, v1
    v_xor_b32 v2, v2, v4
    v_lshl_add_u32 v3, v2, 5, v3
    v_add_u32 v{aD[0]}, {6*SL}, v3
    v_xor_b32 v{aD[1]}, 32, v{aD[0]}
    v_xor_b32 v{aD[2]}, 64, v{aD[0]}
    v_xor_b32 v{aD[3]}, 96, v{aD[0]}
    ''')

def ktab(k):
    return ops(f"""
    s_add_u32 s{sK+k}, s{sK}, {k*1024}
    s_sub_u32 s7, s{sK}, {(14-k)*1024}
    s_min_u32 s{sK+k}, s{sK+k}, s7
    """)

def bmat(t, dst):
    o = ops(f"""
    s_lshr_b32 s{T0}, s{sC}, 2
    s_min_u32 s{T1}, s{sT1}, 1
    s_sub_u32 s{T1}, 64, s{T1}
    s_mul_i32 s{T1}, s{T1}, s{T0}
    s_lshl_b32 s{T0}, s{T0}, 1
    s_sub_u32 s{T0}, 1, s{T0}
    s_and_b32 s{T2}, s{sWV}, 1
    s_lshl_b32 s{T2}, s{T2}, 5
    s_and_b32 s{T3}, s{T1}, 1
    s_mul_i32 s{T3}, s{T3}, 0x80008000
    v_and_b32 v{t}, 15, v0
    v_lshl_add_u32 v{t}, v{t}, 1, s{T2}
    v_mul_lo_u32 v{t}, v{t}, s{T0}
    v_add_u32 v{t}, s{T1}, v{t}
    v_lshrrev_b32 v{t+1}, 4, v0
    v_cvt_f32_u32 v{t+1}, v{t+1}
    """)
    for jh in range(2):
        if jh: o += ops(f'v_add_u32 v{t}, s{T0}, v{t}\ns_xor_b32 s{T3}, s{T3}, 0x80008000')
        o += ops(f"""
        v_cvt_f32_u32 v{t+2}, v{t}
        v_mul_f32 v{t+2}, {f2u(1.0/64)}, v{t+2}
        v_mul_f32 v{t+3}, v{t+1}, v{t+2}
        """)
        for ks in range(4):
            d = dst + 16*jh + 4*ks
            o += ops(f"""
            v_fmamk_f32 v{t+5}, v{t+2}, {f2u(4.0*ks)}, v{t+3}
            v_fmamk_f32 v{t+7}, v{t+2}, {f2u(4.0*ks+16)}, v{t+3}
            v_cos_f32 v{t+4}, v{t+5}
            v_sin_f32 v{t+5}, v{t+5}
            v_cos_f32 v{t+6}, v{t+7}
            v_sin_f32 v{t+7}, v{t+7}
            v_cvt_pk_bf16_f32 v{d}, v{t+4}, v{t+5}
            v_cvt_pk_bf16_f32 v{d+1}, v{t+6}, v{t+7}
            v_xor_b32 v{d+2}, s{T3}, v{d}
            v_xor_b32 v{d+3}, s{T3}, v{d+1}
            """)
    return o

OWNM = 236
def mgen():
    o = ops(f"""
    s_and_b32 s{T2}, s{sCT}, 1
    s_lshl_b32 s{T3}, s{T2}, 11
    s_add_u32 s{T3}, s{T3}, s{sMb}
    s_add_u32 s{T3}, s{T3}, {8*SL}
    s_lshl_b32 s{T2}, s{T2}, 4
    v_and_b32 v208, 15, v0
    v_add_u32 v208, s{T2}, v208
    v_lshrrev_b32 v209, 4, v0
    v_lshlrev_b32 v209, 8, v209
    v_lshl_add_u32 v209, v1, 4, v209
    v_add_u32 v209, s{sRB}, v209
    v_cvt_f32_u32 v209, v209
    v_mul_f32 v209, {f2u(1.0/64)}, v209
    v_add_u32 v212, s{T3}, v{vL16}
    v_bfe_i32 v213, v0, 0, 1
    v_and_b32 v213, 0x80008000, v213
    """)
    for tl in range(2):
        if tl: o += ops('v_xor_b32 v208, 16, v208\nv_xor_b32 v212, 2048, v212')
        dst = OWNM if tl == 0 else 224
        o += ops(f"""
        v_cvt_f32_u32 v210, v208
        v_mul_f32 v210, {f2u(1.0/32)}, v210
        v_mul_f32 v220, v209, v210
        v_add_f32 v221, v220, v210
        v_add_f32 v222, v221, v210
        v_add_f32 v223, v222, v210
        """)
        for q in range(4): o += ops(f'v_cos_f32 v{216+q}, v{220+q}\nv_sin_f32 v{220+q}, v{220+q}')
        for cs in range(2):
            for d in range(2): o += ops(f'v_cvt_pk_bf16_f32 v{dst+4*cs+d}, v{216+4*cs+2*d}, v{217+4*cs+2*d}')
        for cs in range(2):
            for d in range(2): o += ops(f'v_xor_b32 v{dst+4*cs+2+d}, v213, v{dst+4*cs+d}')
        o += [Op(f'ds_write_b128 v212, {vr(dst,4)}', tag='m'), Op(f'ds_write_b128 v212, {vr(dst+4,4)} offset:1024', tag='m')]
    return o

def p1loop(dft, seq, nd):
    nm = 'd' if dft else 'f'
    M = []; start = []
    tilegap = {}
    for S in range(16):
        start.append(len(M))
        b = S & 1
        for jj in range(8):
            for T in range(4):
                A, B = ar(fw(b, T), 4), ar(fx(b, jj), 4)
                if dft: A, B = B, A
                tilegap[(S, jj, T)] = len(M)
                M.append(mf(vr(acc(jj, T), 4), A, B, vr(acc(jj, T), 4) if S else 0))
            if S == 0 and jj == 0:
                for T in range(4): M.append(mf(vr(196+4*T, 4), 'v[192:195]', ar(fw(0, T), 4), 0))
    start.append(len(M))
    G = Gaps(M)
    def stepof(g): return max(S for S in range(16) if start[S] <= g)
    G.vslot = lambda g: g % 4 == 2
    def showmap():
        ch = dict(ds='d', vmem='M', valu='v', trans='t', salu='s')
        for S in range(16):
            print('%2d ' % S + ' '.join(''.join(ch[k] for k in G.cost(g)).ljust(3, '.') for g in range(start[S], start[S+1])), file=sys.stderr)
    common.showmap = showmap
    extra = {S: [] for S in range(17)}
    extrad = {S: [] for S in range(17)}
    bw = {}
    for S in range(1, 16):
        bw[S] = W(vm=[], ds=[])
        G.force(start[S]-1, S_(f'a{S}') + [bw[S]] + S_(f'w{S}') + ([Op('s_barrier')] if P['bar'] else []) + S_(f'b{S}'), close=True)
    wd = sum([dma_D(k) for k in range(14)], [])
    wdcnt = P['wdcnt']
    nw = 0
    dmagap = {}
    prevg = -1
    for S in range(16):
        lst = []
        n = P['cnt'][S] if S < len(P['cnt']) else 0
        for d in p1list[nd:nd+n]:
            assert p1_earliest(d[1].tag) <= S, (d[1].tag, S)
            lst.append(d)
        nd += n
        lst += wd[nw:nw+wdcnt[S]]; nw += wdcnt[S]
        slots = [g for g in range(start[S], start[S+1]) if G.vslot(g)]
        assert len(lst) <= len(slots)
        skip = P.get('skip', {}).get(S, len(slots) - len(lst))
        for n, d in enumerate(lst):
            g = slots[skip + n]
            pre, x = seq.take(d)
            G.put(g, x); dmagap.setdefault(x.tag, []).append(g)
            av = [q for q in range(prevg+1, g) if not G.closed[q] and not G.vslot(q)][-len(pre):] if pre else []
            while len(av) < len(pre): av = [av[0]] + av
            for q, y in zip(av, pre): G.put(q, y)
            prevg = g
    assert nd == len(p1list), nd
    for S in range(15):
        G.chain(frag_reads(S+1), start[S], end=start[S+1]-8, ok=lambda g, o: not G.vslot(g))
    g = G.chain(ops(f"""
    v_lshlrev_b32 v{vCS}, 2, v0
    v_lshl_add_u32 v{vCS}, v1, 8, v{vCS}
    s_lshl4_add_u32 s{sGa}, s{sCT}, s{sS0}
    s_lshl_b32 s{sGa}, s{sGa}, 10
    s_add_u32 s{sGa}, s{sGa}, {CS_OFF}
    s_mov_b32 s4, 0xffff0000
    s_mov_b32 s5, 0xffff0000
    s_mov_b32 s6, 0
    s_mov_b32 s7, -1
    """), 0)
    if dft:
        fo = ops(f"""
        s_and_b32 s{sFo}, s{sCT}, 1
        s_lshl1_add_u32 s{sFo}, s{sRB}, s{sFo}
        s_lshl_b32 s{sFo}, s{sFo}, 6
        s_lshl_b32 s{sGb}, s{sWV}, 28
        s_add_u32 s{sFo}, s{sFo}, s{sGb}
        s_add_u32 s{sFo}, s{sFo}, {ZF}
        v_mov_b32 v{vE}, v{vOne}
        """)
    else:
        fo = ops(f"""
        s_lshl2_add_u32 s{sFo}, s{sCT}, s{sWV}
        s_lshl_b32 s{sGb}, s{sRB}, 7
        s_add_u32 s{sFo}, s{sFo}, s{sGb}
        s_lshl_b32 s{sFo}, s{sFo}, 6
        s_add_u32 s{sFo}, s{sFo}, {FLG}
        s_movk_i32 s{sGb}, 4096
        v_mov_b32 v{vE}, v{vOne}
        v_writelane_b32 v{vE}, s{sGb}, 1
        """)
    rdy = f'buffer_load_dword v{vF}, v{vE}, {srd(sDB)}, 0 offen sc1'
    g = G.chain(ops(f"""
    v_cndmask_b32 v196, v196, v200, s[4:5]
    v_cndmask_b32 v204, v204, v208, s[4:5]
    v_cndmask_b32 v196, v196, v204, s[6:7]
    """) + [Op(f'buffer_store_dword v196, v{vCS}, {srd(sWS)}, s{sGa} offen sc1', tag='es')], max(g+1, 14))
    g2 = G.chain(fo + [Op(f'v_mov_b32 v{vF}, 0'), Op(f'buffer_store_dword v{vF}, v{vE}, {srd(sWS)}, s{sFo} offen sc1', tag='es2'),
                       Op(f'v_mov_b32 v{vE}, 0'), Op(rdy, tag='rdy')], 8)
    fS = P['flagS']
    assert stepof(max(g, g2)) < fS
    extra[fS] += ['rdy', 'es', 'es2']
    g2 = G.chain(spin_check(nm+'rdy', vF, rdy) + ops(f"""
    s_lshl4_add_u32 s4, s{sRB}, s{sCT}
    s_lshl_b32 s4, s4, 6
    s_lshl_b32 s6, s{sWV}, 28
    s_add_u32 s6, s6, s4
    s_add_u32 s6, s6, {EF}
    """) + [Op(f'buffer_store_dword v{vG}, v{vOne}, {srd(sWS)}, s6 offen sc1', tag='ef')], start[fS])
    if dft:
        gm = G.chain([Op(f'v_add_u32 v5, {8*SL}, v{vL16}')] + [Op(f'ds_read_b128 {ar(MA+4*n,4)}, v5 offset:{n*1024}', tag='mr') for n in range(16)], start[1])
        extrad[stepof(gm)+1] += ['mr']
        kc = f'D{WDSLOT.index(8)}'
        assert min(dmagap[kc]) >= start[stepof(gm)+1], stepof(gm)
    g = G.chain(p2consts(), g+1)
    assert g < min(dmagap['D0']) - 4
    gp2 = g
    if P['wdpf'] is not None:
        g = G.chain(ops(f"""
        s_lshl2_add_u32 s{T0}, s2, s{sWV}
        s_mul_i32 s{T0}, s{T0}, 1792
        v_min_u32 v2, 13, v0
        v_lshlrev_b32 v2, 7, v2
        """) + [Op(f'buffer_load_dword v250, v2, {srd(sD)}, s{T0} offen', tag='pf')], max(g+1, start[P['wdpf']]))
    g2 = G.chain(ops(f"""
    s_mul_i32 s4, s{sWV}, 7
    s_lshr_b32 s4, s4, 1
    s_and_b32 s5, s{sT1}, 15
    s_lshl2_add_u32 s6, s{sRB}, s{sWV}
    s_lshl_b32 s6, s6, 2
    v_and_b32 v6, 7, v0
    v_add_u32 v6, s4, v6
    v_min_u32 v6, 13, v6
    v_lshl_add_u32 v6, s5, 4, v6
    v_and_or_b32 v7, v0, 3, s6
    s_mov_b32 s4, 0
    s_mov_b32 s5, 0xff000000
    v_cndmask_b32 v6, v7, v6, s[4:5]
    v_subrev_u32 v7, 16, v0
    v_lshrrev_b32 v7, 1, v7
    v_and_or_b32 v{vE}, v0, 1, 14
    v_lshl_add_u32 v7, v7, 4, v{vE}
    s_mov_b32 s5, 0xffff0000
    v_cndmask_b32 v6, v7, v6, s[4:5]
    v_lshl_add_u32 v7, v0, 4, s{sCT}
    s_mov_b64 s[4:5], 0xffff
    v_cndmask_b32 v6, v6, v7, s[4:5]
    v_lshlrev_b32 v{vE}, 6, v6
    s_mov_b32 s4, {EF}
    """), max(g2, gp2) + 1)
    pS = P['pollS']
    efl = f'buffer_load_dword v{vF}, v{vE}, {srd(sWS)}, s4 offen sc1'
    g2 = G.chain([Op(efl, tag='efl', wide=True)], max(g2+1, start[pS]))
    PL = 192 if dft else 208
    gpre = G.chain(ops(f"""
    s_lshl_b32 s{sGa}, s{sCT}, 14
    s_add_u32 s{sGa}, s{sGa}, {CS_OFF}
    s_lshl2_add_u32 s{sGb}, s{sRB}, s{sWV}
    s_lshl_b32 s{sGb}, s{sGb}, 9
    s_add_u32 s{sGb}, s{sGb}, {ST_OFF}
    v_lshrrev_b32 v6, 4, v0
    v_and_b32 v{vCS}, 240, v{vL16}
    v_lshl_add_u32 v{vCS}, v6, 12, v{vCS}
    v_lshl_add_u32 v{vCS}, v1, 8, v{vCS}
    v_and_b32 v7, 496, v{vL16}
    """), g2+1)
    gl = [W(vm=['efl'])] + spin_check(nm+'ef', vF, efl)
    gl.append(Op(f'buffer_load_dwordx4 v[244:247], v7, {srd(sWS)}, s{sGb} offen sc1', tag='sa'))
    for q in range(4):
        gl.append(Op(f'buffer_load_dwordx4 {vr(PL+4*q,4)}, v{vCS}, {srd(sWS)}, s{sGa} offen offset:{1024*q} sc1', tag='cs'))
    g2 = G.chain(gl, max(gpre+1, g2 + P.get('pw', 26)))
    S1 = stepof(g2)
    sums = ops(f"""
    s_add_u32 s4, s{sMb}, {9*SL}
    v_and_b32 v2, 240, v{vL16}
    v_bfe_u32 v3, v0, 4, 1
    v_lshl_add_u32 v2, v3, 3, v2
    v_lshrrev_b32 v3, 5, v0
    v_lshl_add_u32 v2, v3, 2, v2
    v_add_u32 v2, s4, v2""")
    if dft: sums += ops(f"""
    v_and_b32 v3, 15, v0
    v_lshl_add_u32 v3, v3, 2, s4
    v_lshrrev_b32 v7, 2, v7
    v_add_u32 v7, s4, v7
    v_and_b32 v6, 48, v0
    v_add_u32 v{vE}, s4, v6
    v_add_u32 v6, {9*SL}, v6""")
    else: sums += ops(f"""
    v_and_b32 v3, 48, v0
    v_add_u32 v3, s4, v3
    v_and_b32 v6, 240, v{vL16}
    v_lshlrev_b32 v6, 1, v6
    v_add_u32 v6, {9*SL+1024}, v6
    v_bfe_u32 v7, v0, 4, 1
    v_lshl_add_u32 v7, v1, 1, v7
    v_lshl_add_u32 v7, v7, 2, v6""")
    g4 = G.chain(sums, g2 + 1)
    sw = [W(vm=['sa'])]
    if dft:
        sw += [Op(f'v_mul_f32 v246, {f2u(-1/LOG2E)}, v246'), Op('ds_write_b32 v7, v244 offset:256', tag='b'), Op('ds_write_b32 v7, v246 offset:384', tag='b'), Op('ds_write_b32 v7, v247 offset:512', tag='b')]
    else:
        sw += [Op(f'ds_write_b32 v7, v{244+q} offset:{512*q}', tag='b') for q in range(3)]
    g5 = G.chain(sw, max(g4 + 1, g2 + P.get('gw', 26) - 16))
    Sb = stepof(g5) + 1
    extrad[Sb] += ['b']
    sums = [W(vm=['cs'])]
    for st in (8, 4):
        for q in range(st): sums.append(Op(f'v_add_f32 v{PL+q}, v{PL+q}, v{PL+q+st}'))
    sums += [1] + ops(f"""
    v_permlane32_swap_b32 v{PL}, v{PL+1}
    v_permlane32_swap_b32 v{PL+2}, v{PL+3}
    v_add_f32 v{PL}, v{PL}, v{PL+1}
    v_add_f32 v{PL+2}, v{PL+2}, v{PL+3}""") + [2] + ops(f"""
    v_permlane16_swap_b32 v{PL}, v{PL+2}
    v_add_f32 v{PL}, v{PL}, v{PL+2}""")
    sums.append(Op(f'ds_write_b32 v2, v{PL}', tag='b1'))
    if dft:
        sums += [Op(f'ds_read_b32 v{232+T}, v3 offset:{64*T}', tag='br') for T in range(4)]
        rd = [Op(f'ds_read_b128 {vr(160+4*jj,4)}, v6 offset:{(jj>>1)*4096 + 256 + (jj&1)*64}', tag='br') for jj in range(8)]
        rd2 = [Op(f'ds_read_b128 {vr(192+4*jj,4)}, v6 offset:{(jj>>1)*4096 + 384 + (jj&1)*64}', tag='br2') for jj in range(8)]
        rd2 += [Op(f'ds_read_b128 {vr(224+4*ih,4)}, v{vE} offset:{512 + ih*64}', tag='br2') for ih in range(2)]
    else:
        sums += [Op(f'ds_read_b128 {vr(192+4*T,4)}, v3 offset:{64*T}', tag='br') for T in range(4)]
        rd = [Op(f'ds_read_b128 {vr(160+4*n,4)}, v6 offset:{16*n}', tag='br') for n in range(2)]
        rd2 = [Op(f'ds_read_b128 {vr(168+4*n,4)}, v6 offset:{512*(1+(n>>1)) + 16*(n&1)}', tag='br2') for n in range(4)]
    g2 = G.chain(sums, max(g4 + 1, g2 + P.get('gw', 26)))
    g5 = G.chain(rd, start[Sb])
    g2 = max(g2, g5)
    gfm = G.chain([W(ds=['br'])], g2 + 6) + 1
    g2 = G.chain(rd2, start[15] if dft else g2+1)
    Sc = stepof(g2) + 1
    extrad[Sc] += ['br2']
    kc = f'D{WDSLOT.index(9)}'
    if kc in dmagap: assert min(dmagap[kc]) >= start[Sc], (Sc, stepof(min(dmagap[kc])))
    g = gp2
    for k in range(1, 14):
        g = G.chain(ktab(k), max(g+1, start[P.get('ktS', 6)]))
        if f'D{k}' in dmagap: assert g < min(dmagap[f'D{k}']) - 4
    post = []
    for k in range(4):
        nxt = f'D{WDSLOT.index(WDSLOT[k], k+1)}'
        Sk = stepof(max(dmagap[f'D{k}'])) + 2
        try:
            if Sk > 15: raise RuntimeError
            gk = G.chain(tr_D(k, aD, 6), start[Sk], dry=True)
        except RuntimeError:
            assert nxt not in dmagap
            post += [W(vm=[f'D{k}'])] + tr_D(k, aD, 6); continue
        extra[Sk] += [f'D{k}']
        gk = G.chain(tr_D(k, aD, 6), start[Sk])
        extrad[stepof(gk)+1] += [f'd{k}']
        if nxt in dmagap: assert min(dmagap[nxt]) >= start[stepof(gk)+1], (k, stepof(gk), stepof(min(dmagap[nxt])))
    for k in range(14):
        if f'D{k}' in dmagap: assert min(dmagap[f'D{k}']) >= start[SLOTFREE[WDSLOT[k]]], k
    todo = [(jj, T, v) for jj in range(8) for T in range(4) for v in range(4)]
    def fm(jj, T, v):
        return Op(f'v_fmac_f32 v{acc(jj,T)+v}, v{160+4*jj+v}, v{232+T}') if dft else Op(f'v_fmac_f32 v{acc(jj,T)+v}, v{160+jj}, v{192+4*T+v}')
    for g in range(gfm, len(M)):
        S = stepof(g)
        while todo:
            cand = [t for t in todo if 8 <= (g - tilegap[(S, t[0], t[1])]) % 32 <= 28]
            if not cand or not G.fits(g, fm(*cand[0])): break
            G.put(g, fm(*cand[0])); todo.remove(cand[0])
    post += [fm(*t) for t in todo]
    if P.get('map'): showmap()
    print(nm, 'gather issued', S1, 'bounce', Sb, 'fmac from', stepof(gfm), 'fmac left', len(todo), 'wd issued', nw, file=sys.stderr)
    for S in range(1, 16):
        need = list(extra[S])
        if S < 15: need += [f'W{S+1}', f'X{(S+1)//2}']
        bw[S].vm = need if need else None
        bw[S].ds = ['f'] + extrad[S]
    o = [W(vm=['W1'], ds='all'), Op('s_barrier')] + S_(3) + S_(13, True) + G.linear() + S_(4) + S_(14, True) + post
    return o, wd[nw:]

def interleave(main, extras, every):
    o = []; n = 0
    extras = list(extras)
    for x in main:
        o.append(x); n += 1
        if extras and n % every == 0: o += extras.pop(0)
    for e in extras: o += e
    return o

def ffn_epilogue(seq, wd):
    o = ops(f'''
    s_mul_i32 s{T0}, s{sRB}, {8*HRT}
    s_lshl2_add_u32 s{T1}, s{sCT}, s{sWV}
    s_lshl_b32 s{T2}, s{T1}, 10
    s_add_u32 s{T0}, s{T0}, s{T2}
    ''') + [W(ds='all')] + S_('es') + [Op('.p2align 3')]
    body = []
    for jj in range(8):
        g, u = acc(jj, 0), acc(jj, 2); T = 224 + 8*(jj & 1)
        kk, c1, hi = vr(168 + (jj & 6), 2), vr(176 + (jj & 6), 2), jj & 1
        for d in range(4): body.append(Op(f'v_pk_mul_f32 {vr(T+2*d,2)}, {vr(g+2*d,2)}, {c1} op_sel:[0,{hi}] op_sel_hi:[1,{hi}]'))
        for v in range(8): body.append(Op(f'v_exp_f32 v{T+v}, v{T+v}'))
        for d in range(4): body.append(Op(f'v_pk_mul_f32 {vr(g+2*d,2)}, {vr(g+2*d,2)}, {vr(u+2*d,2)}'))
        for d in range(4): body.append(Op(f'v_pk_fma_f32 {vr(T+2*d,2)}, {vr(T+2*d,2)}, {kk}, {kk} op_sel:[0,{hi},{hi}] op_sel_hi:[1,{hi},{hi}]'))
        for v in range(8): body.append(Op(f'v_rcp_f32 v{T+v}, v{T+v}'))
        for d in range(4): body.append(Op(f'v_pk_mul_f32 {vr(g+2*d,2)}, {vr(g+2*d,2)}, {vr(T+2*d,2)}'))
        for d in range(4): body.append(Op(f'v_cvt_pk_bf16_f32 v{u+d}, v{g+2*d}, v{g+2*d+1}'))
        body.append(Op(f'buffer_store_dwordx4 {vr(u,4)}, v{vL16}, {srd(sWS)}, s{T0} offen sc1', tag=f'h{jj>>2}'))
        body += S_(f'e{jj}')
        if jj < 7: body.append(Op(f's_add_u32 s{T0}, s{T0}, {HRT}'))
        if jj == P['fA']:
            body += [W(vm=['h0']), Op('s_nop 0'), Op(f'buffer_store_dword v{vG}, v{vOne}, {srd(sWS)}, s{sFo} offen sc1', tag='fl')]
    ex = []
    for d in wd:
        pre, x = seq.take(d); ex.append(pre + ([Op('s_nop 0')] if pre else []) + [x])
    o += interleave(body, ex, P.get('ev', 12))
    o += [Op(f's_add_u32 s{sFo}, s{sFo}, 4096')] + S_(5)
    return o

def dft_epilogue(seq, wd):
    o = [W(ds='all'), Op('s_barrier')]
    PK = [[160, 164, 168, 172, 176, 180], [184, 188, 244, 248, 252, 232]]
    def prep(j):
        r = []; pk = PK[j & 1]
        for ih in range(2):
            for T in range(4):
                for v in range(4): r.append(Op(f'v_mul_f32 v{acc(2*j+ih,T)+v}, v{acc(2*j+ih,T)+v}, v{192+4*(2*j+ih)+v}'))
        for et in range(2):
            for d in range(4):
                s = acc(2*j + (d >> 1), et) + 2*(d & 1); sb = acc(2*j + (d >> 1), 2+et) + 2*(d & 1)
                r.append(Op(f'v_cvt_pk_bf16_f32 v{pk[et]+d}, v{s}, v{s+1}'))
                r.append(Op(f'v_cvt_pk_bf16_f32 v{pk[2+et]+d}, -v{s}, -v{s+1}'))
                r.append(Op(f'v_cvt_pk_bf16_f32 v{pk[4+et]+d}, v{sb}, v{sb+1}'))
        return r
    def mm(j):
        r = []; pk = PK[j & 1]
        for ph in range(2):
            for tt in range(2):
                for et in range(2):
                    A = ar(MA + 16*j + 8*tt + 4*ph, 4)
                    zr, zi = vr(acc(2*j+tt, et), 4), vr(acc(2*j+tt, 2+et), 4)
                    r.append(Op(mf(zr, A, vr(pk[4+et] if ph else pk[et], 4), zr if ph else 0)))
                    r.append(Op(mf(zi, A, vr(pk[2+et] if ph else pk[4+et], 4), zi if ph else 0)))
        return r
    nyq = [Op(f'v_cvt_pk_bf16_f32 v{224+d}, v{224+2*d}, v{225+2*d}') for d in range(4)]
    nyq += ops(f'''
    s_and_b32 s{T2}, s{sCT}, 1
    s_mul_i32 s{T0}, s{sRB}, {ZROW}
    s_add_u32 s{T0}, s{T0}, {Z_OFF}
    s_mul_i32 s{T1}, s{T2}, {16*ZT1}
    s_add_u32 s{T1}, s{T1}, s{T0}
    s_lshl2_add_u32 s{T1}, s{sWV}, s{T1}
    s_add_u32 s{T1}, s{T1}, 4096
    s_lshl_b32 s{T3}, s{T2}, 11
    s_add_u32 s{T0}, s{T0}, s{T3}
    s_mov_b32 s{T3}, {ZT1}
    v_mul_lo_u32 v2, v0, s{T3}
    v_lshrrev_b32 v3, 4, v0
    s_lshl_b32 s{T3}, s{T3}, 2
    v_mul_lo_u32 v3, v3, s{T3}
    v_and_b32 v4, 240, v{vL16}
    v_lshl_add_u32 v4, v1, 9, v4
    v_add_u32 v3, v3, v4
    ''')
    body = prep(0)
    for j in range(4):
        nxt = prep(j+1) if j < 3 else nyq
        m = mm(j); per = (len(nxt) + 15)//16
        for n, x in enumerate(m):
            body.append(x); body += nxt[n*per:(n+1)*per]
    body += [Op(mf('v[192:195]', 'v[224:227]', vr(OWNM, 4), 0)), Op(mf('v[196:199]', 'v[224:227]', vr(OWNM+4, 4), 0))]
    n = 0
    for tt in range(2):
        for v in range(4):
            for et in range(2):
                T = 160 + 4*(n % 8); n += 1
                for j in range(4): body.append(Op(f'v_cvt_pk_bf16_f32 v{T+j}, v{acc(2*j+tt,et)+v}, v{acc(2*j+tt,2+et)+v}'))
                body.append(Op(f'buffer_store_dwordx4 {vr(T,4)}, v3, {srd(sWS)}, s{T0} offen offset:{256*et} sc1', tag='z'))
            body.append(Op(f's_add_u32 s{T0}, s{T0}, {ZT1 if v < 3 else 13*ZT1}'))
    ex = []
    for d in wd:
        pre, x = seq.take(d); ex.append(pre + [x])
    o += interleave(body, ex, 12)
    o += ops('v_cvt_pk_bf16_f32 v192, v192, -v196\ns_mov_b64 exec, 0xffff')
    o += [Op(f'buffer_store_dword v192, v2, {srd(sWS)}, s{T1} offen sc1', tag='z'), Op('s_mov_b64 exec, -1')]
    o += S_(5)
    return o

def p2():
    NB = P['nb']
    F = 32; Y = 96; ZR = 112; XR = 144; EXR = 112; BMV = 152; XS = 152; HB = 192
    aDl = [8, 9, 10, 11]; aDm = [12, 13, 14, 15]
    vH = [[16, 17], [18, 19]]; vZ = [20, 21]; vXO = 28; aEw = 2; aEr = [3, 4, 5]
    sZ = [40, 41, 42, 43]; sXO = [48, 39]; sFL = [44, 45]
    def fa(jh, ihl, ctl): return F + 4*((jh*2 + ihl)*4 + ctl)
    fl0 = f'buffer_load_dword v{vF}, v{vE}, {srd(sWS)}, s{sFL[0]} offen sc1'
    fl1 = f'buffer_load_dword v{vF}, v{vE}, {srd(sWS)}, s{sFL[1]} offen sc1'
    o = ops(f"""
    k_p2:
    s_and_b32 s{T0}, s{sT1}, 15
    s_lshl_b32 s{T1}, s{T0}, 13
    s_mul_i32 s{T4}, s{sWV}, {14*64}
    s_add_u32 s{T1}, s{T1}, s{T4}
    s_add_u32 s{sFL[0]}, s{T1}, {FLG}
    s_add_u32 s{sFL[1]}, s{T1}, {FLG+4096}
    s_lshl_b32 s{T4}, s{T4}, 4
    v_and_b32 v6, 15, v0
    v_min_u32 v{vE}, 13, v6
    v_lshlrev_b32 v{vE}, 6, v{vE}
    """)
    for n in range(4):
        o += ops(f'v_subrev_u32 v{aDl[n]}, {6*SL}, v{aD[n]}\nv_subrev_u32 v{aDm[n]}, {2*SL}, v{aD[n]}')
    def trk(k):
        s = WDSLOT[k]
        return tr_D(k, *((aDl, 0) if s < 4 else ((aDm, 4) if s < 6 else (aD, 6))))
    NPRE = P.get('npre', 6)
    o += ops(f'''
    s_lshr_b32 s{T1}, s{sT1}, 4
    s_lshl2_add_u32 s{T0}, s{T0}, s{T1}
    s_and_b32 s{T1}, s{sWV}, 1
    s_lshl1_add_u32 s{T2}, s{T0}, s{T1}
    s_xor_b32 s{T3}, s{T2}, 1
    s_mul_i32 s{T2}, s{T2}, {HRT}
    s_mul_i32 s{T3}, s{T3}, {HRT}
    s_add_u32 s{T2}, s{T2}, s{T4}
    s_add_u32 s{T3}, s{T3}, s{T4}
    v_add_u32 v{vH[0][0]}, s{T2}, v{vL16}
    v_add_u32 v{vH[0][1]}, s{T3}, v{vL16}
    v_add_u32 v{vH[1][0]}, {4*HRT}, v{vH[0][0]}
    v_add_u32 v{vH[1][1]}, {4*HRT}, v{vH[0][1]}
    s_lshr_b32 s{T2}, s{sWV}, 1
    s_lshl1_add_u32 s{T2}, s{sC}, s{T2}
    s_lshl_b32 s{T2}, s{T2}, 5
    s_lshl_b32 s{T1}, s{T1}, 20
    s_lshl_b32 s{T3}, s{sT1}, 10
    s_add_u32 s{T1}, s{T1}, s{T3}
    s_lshl1_add_u32 s{sXO[0]}, s{T2}, s{T1}
    s_add_u32 s{sXO[1]}, s{sXO[0]}, 32768
    v_bfe_u32 v7, v0, 4, 1
    v_lshlrev_b32 v7, 5, v7
    v_lshl_add_u32 v7, v6, 16, v7
    v_lshrrev_b32 v{vXO}, 5, v0
    v_lshl_add_u32 v{vXO}, v{vXO}, 4, v7
    s_sub_u32 s{T3}, 32, s{sT1}
    s_and_b32 s{T3}, s{T3}, 31
    s_cmp_ge_u32 s{sC}, 4
    s_cselect_b32 s{T0}, 8192, 0
    s_cselect_b32 s{T1}, -16, 16
    s_cselect_b32 s{T3}, s{T3}, s{sT1}
    v_add_u32 v6, s{T2}, v6
    v_mul_lo_u32 v6, v6, s{T1}
    v_add_u32 v6, s{T0}, v6
    v_lshrrev_b32 v7, 4, v0
    v_mul_u32_u24 v7, {ZROW}, v7
    v_add_u32 v{vZ[0]}, v6, v7
    s_lshl_b32 s{T1}, s{T1}, 4
    v_add_u32 v{vZ[1]}, s{T1}, v{vZ[0]}
    s_mul_i32 s{T3}, s{T3}, {ZT1}
    s_add_u32 s{sZ[0]}, s{T3}, {Z_OFF}
    s_add_u32 s{sZ[1]}, s{T3}, {Z_OFF+4*ZROW}
    s_add_u32 s{sZ[2]}, s{T3}, {Z_OFF+8*ZROW}
    s_add_u32 s{sZ[3]}, s{T3}, {Z_OFF+12*ZROW}
    s_mov_b32 s{T4}, {ZF}
    v_lshl_add_u32 v{aEw}, v1, 12, v{vL16}
    v_xor_b32 v{aEr[0]}, 4096, v{aEw}
    v_xor_b32 v{aEr[1]}, 8192, v{aEw}
    v_xor_b32 v{aEr[2]}, 12288, v{aEw}
    v_and_b32 v7, 31, v0
    v_lshlrev_b32 v7, 6, v7
    ''')
    bm = bmat(240, BMV); nb1 = P.get('bm1', 60)
    o += bm[:nb1]
    o += S_('q0') + [Op(fl0, tag='fl0')] + bm[nb1:] + [Op('s_waitcnt vmcnt(1)'), Op('s_barrier')] + S_(10)
    o += [Op(f'buffer_store_dword v{vG}, v{vOne}, {srd(sWS)}, s{sFo} offen sc1', tag='flb')]
    for k in range(4, NPRE): o += trk(k)
    o += [W(vm=['fl0'])] + spin_check('fl0', vF, fl0) + S_(6, wait=True)
    L = []
    def hl(jh, k, ihl):
        n = len([x for x in L if x.tag[0] == 'h'])
        return Op(f'buffer_load_dwordx4 {vr(HB+4*(n%NB),4)}, v{vH[jh][ihl]}, {srd(sWS)}, s{sK+k} offen sc1', tag=f'h{n}')
    for k in range(14):
        for ihl in range(2): L.append(hl(0, k, ihl))
    for ks in range(4):
        for ctl in range(2): L.append(Op(f'buffer_load_dwordx4 {vr(ZR+4*(2*ks+ctl),4)}, v{vZ[ctl]}, {srd(sWS)}, s{sZ[ks]} offen sc1', tag=f'z{2*ks+ctl}'))
    for k in range(14):
        for ihl in range(2): L.append(hl(1, k, ihl))
    M = []; use = {}
    n = 0
    def hpass(jh):
        nonlocal n
        for k in range(14):
            for ihl in range(2):
                use[f'h{n}'] = (len(M), len(M)+3)
                for ctl in range(4):
                    d = vr(fa(jh, ihl, ctl), 4)
                    M.append(mf(d, ar(16*k+4*ctl, 4), vr(HB+4*(n % NB), 4), d if k else 0))
                n += 1
    hpass(0)
    y0 = len(M)
    for ks in range(4):
        for ctl in range(2):
            use[f'z{2*ks+ctl}'] = (len(M), len(M)+1)
            for jh in range(2):
                d = vr(Y + 8*jh + 4*ctl, 4)
                M.append(mf(d, vr(ZR+4*(2*ks+ctl), 4), vr(BMV+16*jh+4*ks, 4), d if ks else 0))
    p1s = len(M)
    hpass(1)
    G = Gaps(M)
    WIN = P.get('win', 10)
    o += L[:WIN]
    o += [Op(f'buffer_load_dwordx4 {vr(XR+4*jh,4)}, v{vXO}, {srd(sX)}, s{sXO[jh]} offen', tag='x') for jh in range(2)]
    zfl = f'buffer_load_dword v6, v7, {srd(sWS)}, s{T4} offen sc1'
    o += [W(vm=['h0'], ds='all')]
    for tag, (a, b) in use.items():
        if a == 0: continue
        k = a // 8 if a < y0 else None
        G.put(a-1, W(vm=[tag], ds=[f'd{k}'] if (k is not None and a % 8 == 0 and k >= NPRE) else None))
    lg = {}
    g = 0
    for i in range(WIN, len(L)):
        x = L[i]
        g = max(g, use[L[i-WIN].tag][0])
        if x.tag[0] == 'h':
            hn = int(x.tag[1:])
            if hn >= NB: g = max(g, use[f'h{hn-NB}'][1])
        g = G.chain([x], g); lg[x.tag] = g
        assert g < use[x.tag][0] - 1
        g += 1
    ga = G.chain([Op(zfl, tag='zf'), Op(fl1, tag='fl1')], lg['z0'] - P.get('zlead', 44))
    gb = G.chain([W(vm=['fl1'])] + S_(11) + spin_check('zf', 6, zfl) + spin_check('fl1', vF, fl1) + S_(12), lg['z0'] - 14, end=lg['z0']-1)
    g = 0
    for k in range(NPRE, 14):
        g = G.chain(trk(k), g, end=8*k-6) + 1
    def exw(jh): return [Op(f'ds_write_b128 v{aEw}, {vr(fa(jh, d&1, (d&2)+t),4)} offset:{(d-1)*SL + jh*2048 + t*1024}', tag='e') for d in (1, 2, 3) for t in range(2)]
    def exr(jh): return [Op(f'ds_read_b128 {vr(EXR+8*(d-1)+4*t,4)}, v{aEr[d-1]} offset:{(d-1)*SL + jh*2048 + t*1024}', tag='e') for d in (1, 2, 3) for t in range(2)]
    def fin(jh, pk):
        f = fa(jh, 0, 0); y = Y + 8*jh; x = XR + 4*jh; T = EXR
        r = []
        def bin_(opn, d, a, b):
            if pk: return [Op(f'v_pk_{opn}_f32 {vr(d+2*q,2)}, {vr(a+2*q,2)}, {vr(b+2*q,2)}') for q in range(4)]
            return [Op(f'v_{opn}_f32 v{d+q}, v{a+q}, v{b+q}') for q in range(8)]
        r += bin_('add', f, f, T) + bin_('add', T+8, T+8, T+16) + bin_('add', f, f, T+8)
        r += [Op(f'v_mul_f32 v{T+q}, s{T0}, v{f+q}') for q in range(8)]
        r += [Op(f'v_exp_f32 v{T+q}, v{T+q}') for q in range(8)]
        r += bin_('mul', f, f, y)
        r += [Op(f'v_add_f32 v{T+q}, 1.0, v{T+q}') for q in range(8)]
        r += [Op(f'v_rcp_f32 v{T+q}, v{T+q}') for q in range(8)]
        xs = XS + 8*jh
        r += [Op(f'v_fmac_f32 v{xs+q}, v{f+q}, v{T+q}') for q in range(8)]
        r += [Op(f'v_cvt_pk_bf16_f32 v{x+q}, v{xs+2*q}, v{xs+2*q+1}') for q in range(4)]
        r2 = [Op(f'v_permlane16_swap_b32 v{x}, v{x+2}'), Op(f'v_permlane16_swap_b32 v{x+1}, v{x+3}'),
              Op(f'buffer_store_dwordx4 {vr(x,4)}, v{vXO}, {srd(sO)}, s{sXO[jh]} offen', tag='o')]
        return r, r2
    def xprep(jh):
        x = XR + 4*jh; xs = XS + 8*jh
        r = [Op(f'v_permlane16_swap_b32 v{x}, v{x+2}'), Op(f'v_permlane16_swap_b32 v{x+1}, v{x+3}')]
        for q in range(4): r += ops(f'v_lshlrev_b32 v{xs+2*q}, 16, v{x+q}\nv_and_b32 v{xs+2*q+1}, 0xffff0000, v{x+q}')
        return r
    g = G.chain(exw(0), y0 + 6, stride=2)
    g2 = G.chain(ops(f's_mov_b32 s{T0}, {f2u(-LOG2E)}') + xprep(0) + xprep(1), p1s)
    g = G.chain([W(ds='all'), Op('s_barrier')], g + 6)
    g = G.chain(exr(0), max(g + 1, p1s))
    r, r2 = fin(0, False)
    g = G.chain([W(ds='all')] + r + [2] + r2, max(g + 6, g2 + 1, p1s + 6))
    print('p2 fin0 ends at gap', g, 'of', len(M), file=sys.stderr)
    o += G.linear() + S_(7)
    r, r2 = fin(1, True)
    o += exw(1) + [W(ds='all'), Op('s_barrier')] + exr(1) + [W(ds='all')] + r + r2
    o += S_(8)
    if common.STAMPS: o += [W(vm='all')] + S_(9)
    return o

def build():
    k = K(KN)
    seq = DmaSeq()
    pro, nd = prologue(seq)
    m0 = seq.m0
    lf, wf = p1loop(False, seq, nd); ef = ffn_epilogue(seq, wf)
    seq.m0 = m0
    ld, wdd = p1loop(True, seq, nd); ed = dft_epilogue(seq, wdd)
    A = resolve(pro + lf + ef); n = len(resolve(pro))
    B = resolve(pro + ld + ed)
    C = resolve(p2())
    for x in A[:n]: k(x)
    k(f's_cmp_ge_u32 s{sCT}, 14\ns_cbranch_scc1 k_dft')
    for x in A[n:]: k(x)
    for x in C: k(x)
    stamp_flush(k, list(range(len(STS))), sWV, wsptr=(sWS, sWS+1), vt=(2, 3))
    k('k_end:\ns_endpgm\nk_dft:')
    for x in B[n:]: k(x)
    k('s_branch k_p2')
    for x in slow: k(x.text)
    k('k_last:\ns_endpgm')
    return k

if __name__ == '__main__':
    try: k = build()
    except Exception:
        common.showmap(); raise
    open(sys.argv[1], 'w').write(assemble([(KN, 256, 256, 163840)], [(k, 512, 256)]).replace('next_free_sgpr 100', 'next_free_sgpr 102'))
```
